```python
import torch

def _softmax(x, axis=-1):
    return torch.softmax(x, dim=axis)
def _gelu(x):
    return torch.nn.functional.gelu(x, approximate="tanh")
def _silu(x):
    return torch.nn.functional.silu(x)
def _sigmoid(x):
    return torch.sigmoid(x)
def _layernorm(x, axis=-1, eps=1e-5):
    m = x.mean(dim=axis, keepdim=True)
    v = x.var(dim=axis, keepdim=True, unbiased=False)
    return (x - m) / torch.sqrt(v + eps)
def _scatter_add(tgt, idx, src, axis=0):
    return tgt.clone().index_add_(axis, idx, src)
def _segment_sum(src, seg, n):
    out = torch.zeros((n,) + src.shape[1:], dtype=src.dtype)
    return out.index_add_(0, seg, src)
def _pad(x, pw):
    flat = tuple(v for pair in reversed(pw) for v in pair)
    return torch.nn.functional.pad(x, flat)

kernel_name = 'sequential_preLN__linear_attn_block__mixer_s_mlp__prompt'

def setup_inputs():

    _w = (lambda a: (lambda t: t.to(torch.bfloat16) if t.is_floating_point() else t)(torch.as_tensor(a)))
    def _A_setup():
        B, S, D = 1, 2048, 576
        return {
            "x": _w((lambda *s: torch.randn(*s, dtype=torch.bfloat16) * 0.05)(B, S, D)),
            "wqkv": _w((lambda *s: torch.randn(*s, dtype=torch.bfloat16) * 0.05)(D, 3 * D)),
            "wo": _w((lambda *s: torch.randn(*s, dtype=torch.bfloat16) * 0.05)(D, D)),
        }
    _A_in = _A_setup()

    def _B_setup():
        B, S, D, F = 1, 2048, 576, 4608
        return {
            "x":  _w((lambda *s: torch.randn(*s, dtype=torch.bfloat16) * 0.05)(B, S, D)),
            "w1": _w((lambda *s: torch.randn(*s, dtype=torch.bfloat16) * 3.2)(D, D) * (D ** -0.5)),
            "w2": _w((lambda *s: torch.randn(*s, dtype=torch.bfloat16) * 3.2)(D, D) * (D ** -0.5)),
            "w3": _w((lambda *s: torch.randn(*s, dtype=torch.bfloat16) * 3.2)(D, F) * (D ** -0.5)),
            "w4": _w((lambda *s: torch.randn(*s, dtype=torch.bfloat16) * 1.6)(F, D) * (F ** -0.5)),
        }
    _B_in = _B_setup()

    return {
        "A_x": _A_in["x"],
        "A_wqkv": _A_in["wqkv"],
        "A_wo": _A_in["wo"],
        "B_x": _B_in["x"],
        "B_w1": _B_in["w1"],
        "B_w2": _B_in["w2"],
        "B_w3": _B_in["w3"],
        "B_w4": _B_in["w4"],
    }

def reference(A_x, A_wqkv, A_wo, B_x, B_w1, B_w2, B_w3, B_w4):
    def _A_ref(x, wqkv, wo):
        B, S, D = x.shape
        H = 32; Dh = D // H
        qkv = (lambda x, *d: x.permute(*d))((x @ wqkv).reshape(B, S, 3, H, Dh), 2, 0, 3, 1, 4)
        q, k, v = qkv[0], qkv[1], qkv[2]
        phi = lambda t: torch.where(t > 0, t + 1, torch.exp(t)) + 1e-6
        pq, pk = phi(q), phi(k)
        kv = torch.einsum("bhsd,bhse->bhde", pk, v)
        z = torch.einsum("bhsd->bhd", pk)
        num = torch.einsum("bhqd,bhde->bhqe", pq, kv)
        den = torch.einsum("bhqd,bhd->bhq", pq, z)[..., None] + 1e-6
        o = num / den
        return (lambda x, *d: x.permute(*d))(o, 0, 2, 1, 3).reshape(B, S, D) @ wo

    def _B_ref(x, w1, w2, w3, w4):
        B, S, D = x.shape
        h = _gelu(_layernorm(x, axis=-1) @ w1)
        c = D // 4
        g0 = _pad(h[:, :, 0*c:1*c], ((0, 0), (1, 0), (0, 0)))[:, :S, :]
        g1 = _pad(h[:, :, 1*c:2*c], ((0, 0), (0, 1), (0, 0)))[:, 1:, :]
        g2 = _pad(h[:, :, 2*c:3*c], ((0, 0), (2, 0), (0, 0)))[:, :S, :]
        g3 = _pad(h[:, :, 3*c:   ], ((0, 0), (0, 2), (0, 0)))[:, 2:, :]
        hs = torch.concatenate([g0, g1, g2, g3], axis=-1) @ w2
        x1 = x + hs
        h2 = _gelu(_layernorm(x1, axis=-1) @ w3) @ w4
        return x1 + h2

    x = A_x
    h = x + _A_ref(_layernorm(x, axis=-1), A_wqkv, A_wo)
    h2 = h + _B_ref(_layernorm(h, axis=-1), B_w1, B_w2, B_w3, B_w4)
    return h2
```

```python
import sys, json
NAME = "sequential_preLN__linear_attn_block__mixer_s_mlp__prompt"
S, D, F = 2048, 576, 4608
MB = 1 << 20
IN = dict(x=0, wqkv=8, wo=16, bx=24, w1=32, w2=40, w3=48, w4=56, out=64, dbg=72, ws=80)
INSZ = dict(x=S*D*2, wqkv=D*3*D*2, wo=D*D*2, w1=D*D*2, w2=D*D*2, w3=D*F*2, w4=D*F*2, out=S*D*2)
WS = {}
_off = 0
def wsalloc(name, nbytes):
    global _off
    WS[name] = (_off, nbytes)
    _off += (nbytes + 0xFFFFF) & ~0xFFFFF
for n, b in [("WqkvT", 1728*576*2), ("WoT", D*D*2), ("W1T", D*D*2), ("W2T", D*D*2), ("W3T", D*F*2), ("W4T", D*F*2),
             ("A0", S*D*2), ("PQ", S*D*2), ("PKT", D*S*2), ("VT", 608*S*2), ("KV", 576*608*4), ("BDt", D*D*2), ("Zt", D*D*2),
             ("NUM", S*D*4), ("O", S*D*2), ("H", S*D*2), ("LN1", S*D*2), ("LN2", S*D*2), ("HSIN", S*D*2), ("X1", S*D*2),
             ("LN3", S*D*2), ("HH", S*F*2)]:
    wsalloc(n, b)

launches = []
body = []
descs = []
def e(s): body.append("    " + s)
def lab(s): body.append(s + ":")

def srd(sreg, buf, off=0, size=None):
    if buf in IN:
        slot = IN[buf]; base = off; sz = (INSZ[buf] - off) if size is None else size
    else:
        slot = IN["ws"]; base = WS[buf][0] + off; sz = (WS[buf][1] - off) if size is None else size
    e(f"s_load_dwordx2 s[4:5], s[0:1], {slot}")
    e("s_waitcnt lgkmcnt(0)")
    e(f"s_add_u32 s{sreg}, s4, {base}")
    e(f"s_addc_u32 s{sreg+1}, s5, 0")
    e(f"s_mov_b32 s{sreg+2}, {sz}")
    e(f"s_mov_b32 s{sreg+3}, 0x20000")

def kernel(name, grid, block, vgprs=64, lds=0, ydim=False):
    launches.append(f"; @launch kernel={name} grid=({grid[0]},{grid[1]},{grid[2]}) block=({block},1,1) lds={lds}")
    body.append(f".globl {name}\n.p2align 8\n.type {name},@function\n{name}:")
    descs.append(f""".p2align 6
.amdhsa_kernel {name}
  .amdhsa_next_free_vgpr {vgprs}
  .amdhsa_next_free_sgpr 64
  .amdhsa_accum_offset {vgprs}
  .amdhsa_group_segment_fixed_size 0
  .amdhsa_kernarg_size 88
  .amdhsa_user_sgpr_count 2
  .amdhsa_user_sgpr_kernarg_segment_ptr 1
  .amdhsa_system_sgpr_workgroup_id_x 1
  .amdhsa_system_sgpr_workgroup_id_y {1 if ydim else 0}
  .amdhsa_float_denorm_mode_32 3
.end_amdhsa_kernel""")

def k_transpose(name, src, soff_elems, ld, R, C, dst):
    gx = (C + 255) // 256
    kernel(name, (gx, R, 1), 256, ydim=True)
    e(f"s_cmp_ge_u32 s2, {gx}")
    e(f"s_cbranch_scc1 {name}_done")
    srd(8, src); srd(12, dst)
    e("s_lshl_b32 s16, s2, 8")
    e("v_add_u32 v1, s16, v0")
    e(f"v_cmp_gt_u32 vcc, {C}, v1")
    e("s_and_saveexec_b64 s[20:21], vcc")
    e(f"s_cbranch_execz {name}_done")
    e(f"s_mul_i32 s17, s3, {ld}")
    e("v_add_u32 v2, s17, v1")
    e("v_lshlrev_b32 v2, 1, v2")
    e("buffer_load_ushort v3, v2, s[8:11], 0 offen")
    e(f"s_mov_b32 s18, {R}")
    e("v_mul_lo_u32 v4, v1, s18")
    e("v_add_u32 v4, s3, v4")
    e("v_lshlrev_b32 v4, 1, v4")
    e("s_waitcnt vmcnt(0)")
    e("buffer_store_short v3, v4, s[12:15], 0 offen")
    lab(f"{name}_done")
    e("s_endpgm")

def wave_sum(v, tmp):
    for off in (0x041F, 0x081F, 0x101F, 0x201F, 0x401F):
        e(f"ds_swizzle_b32 v{tmp}, v{v} offset:{off:#x}")
        e("s_waitcnt lgkmcnt(0)")
        e(f"v_add_f32 v{v}, v{v}, v{tmp}")
    e("s_nop 1")
    e(f"v_readlane_b32 s30, v{v}, 0")
    e(f"v_readlane_b32 s31, v{v}, 32")
    e("s_nop 3")
    e(f"v_mov_b32 v{v}, s30")
    e(f"v_add_f32 v{v}, s31, v{v}")

def ln_regs(base):
    e(f"v_mov_b32 v30, v{base}")
    for i in range(1, 9): e(f"v_add_f32 v30, v30, v{base+i}")
    wave_sum(30, 31)
    e(f"v_mul_f32 v30, {1.0/576:.9e}, v30".replace("e-0", "e-"))
    for i in range(9): e(f"v_sub_f32 v{base+i}, v{base+i}, v30")
    e(f"v_mul_f32 v30, v{base}, v{base}")
    for i in range(1, 9): e(f"v_fmac_f32 v30, v{base+i}, v{base+i}")
    wave_sum(30, 31)
    e(f"v_mov_b32 v31, 0x3727c5ac")
    e(f"v_fmac_f32 v31, 0x3ae38e39, v30")
    e("v_rsq_f32 v31, v31")
    e("s_nop 1")
    for i in range(9): e(f"v_mul_f32 v{base+i}, v{base+i}, v31")

def f2u(x):
    import struct
    return struct.unpack("<I", struct.pack("<f", x))[0]

def k_ln(name, src, dst1, dst2=None):
    kernel(name, (S, 1, 1), 64)
    e(f"s_cmp_ge_u32 s2, {S}")
    e(f"s_cbranch_scc1 {name}_done")
    srd(8, src); srd(12, dst1)
    if dst2: srd(16, dst2)
    e("s_mul_i32 s20, s2, 1152")
    e("v_lshlrev_b32 v1, 1, v0")
    e("v_add_u32 v1, s20, v1")
    for i in range(9):
        e(f"buffer_load_ushort v{10+i}, v1, s[8:11], 0 offen offset:{i*128}")
    e("s_waitcnt vmcnt(0)")
    for i in range(9): e(f"v_lshlrev_b32 v{10+i}, 16, v{10+i}")
    ln_regs(10)
    for i in range(9):
        e(f"v_cvt_pk_bf16_f32 v{20+i}, v{10+i}, v{10+i}")
    for i in range(9):
        e(f"buffer_store_short v{20+i}, v1, s[12:15], 0 offen offset:{i*128}")
    if dst2:
        for i in range(9): e(f"v_lshlrev_b32 v{10+i}, 16, v{20+i}")
        ln_regs(10)
        e("s_waitcnt vmcnt(0)")
        for i in range(9):
            e(f"v_cvt_pk_bf16_f32 v{20+i}, v{10+i}, v{10+i}")
        for i in range(9):
            e(f"buffer_store_short v{20+i}, v1, s[16:19], 0 offen offset:{i*128}")
    lab(f"{name}_done")
    e("s_endpgm")

def gelu(v, t1, t2):
    c1 = 2 * 0.7978845608028654 * 1.4426950408889634
    c2 = c1 * 0.044715
    e(f"v_mul_f32 v{t1}, v{v}, v{v}")
    e(f"v_mov_b32 v{t2}, {f2u(-c1):#x}")
    e(f"v_fmac_f32 v{t2}, {f2u(-c2):#x}, v{t1}")
    e(f"v_mul_f32 v{t2}, v{t2}, v{v}")
    e(f"v_exp_f32 v{t2}, v{t2}")
    e("s_nop 0")
    e(f"v_add_f32 v{t2}, 1.0, v{t2}")
    e(f"v_rcp_f32 v{t2}, v{t2}")
    e("s_nop 0")
    e(f"v_mul_f32 v{v}, v{v}, v{t2}")

def phi(v, t1, t2):
    e(f"v_mul_f32 v{t1}, {f2u(1.4426950408889634):#x}, v{v}")
    e(f"v_exp_f32 v{t1}, v{t1}")
    e(f"v_add_f32 v{t2}, 1.0, v{v}")
    e(f"v_cmp_lt_f32 vcc, 0, v{v}")
    e("s_nop 1")
    e(f"v_cndmask_b32 v{v}, v{t1}, v{t2}, vcc")
    e(f"v_add_f32 v{v}, {f2u(1e-6):#x}, v{v}")

def k_gemm(name, A, lda, Aoff, Bt, ldb, Boff, M, N, K, C, ldc, ctype, epi=None, res=(), shift=False):
    gx, gy = N // 32, M // 32
    kernel(name, (gx, gy, 1), 64, vgprs=96, ydim=True)
    e(f"s_cmp_ge_u32 s2, {gx}")
    e(f"s_cbranch_scc1 {name}_done")
    srd(8, A, Aoff); srd(12, Bt, Boff); srd(16, C)
    for i, r in enumerate(res): srd(20 + 4*i, r)
    e("v_and_b32 v1, 15, v0")
    e("v_lshrrev_b32 v2, 4, v0")
    e("s_lshl_b32 s40, s3, 5")
    e("s_lshl_b32 s41, s2, 5")
    e("v_add_u32 v3, s40, v1")
    e(f"s_mov_b32 s42, {lda*2}")
    e("v_mul_lo_u32 v3, v3, s42")
    e("v_lshl_add_u32 v3, v2, 4, v3")
    e(f"v_add_u32 v4, {16*lda*2}, v3")
    e("v_add_u32 v5, s41, v1")
    e(f"s_mov_b32 s42, {ldb*2}")
    e("v_mul_lo_u32 v5, v5, s42")
    e("v_lshl_add_u32 v5, v2, 4, v5")
    e(f"v_add_u32 v6, {16*ldb*2}, v5")
    for i in range(16): e(f"v_mov_b32 v{32+i}, 0")
    e("s_mov_b32 s43, 0")
    lab(f"{name}_loop")
    e("buffer_load_dwordx4 v[8:11], v3, s[8:11], s43 offen")
    e("buffer_load_dwordx4 v[12:15], v4, s[8:11], s43 offen")
    e("buffer_load_dwordx4 v[16:19], v5, s[12:15], s43 offen")
    e("buffer_load_dwordx4 v[20:23], v6, s[12:15], s43 offen")
    e("s_waitcnt vmcnt(0)")
    e("v_mfma_f32_16x16x32_bf16 v[32:35], v[8:11], v[16:19], v[32:35]")
    e("v_mfma_f32_16x16x32_bf16 v[36:39], v[8:11], v[20:23], v[36:39]")
    e("v_mfma_f32_16x16x32_bf16 v[40:43], v[12:15], v[16:19], v[40:43]")
    e("v_mfma_f32_16x16x32_bf16 v[44:47], v[12:15], v[20:23], v[44:47]")
    e("s_add_u32 s43, s43, 64")
    e(f"s_cmp_lt_u32 s43, {K*2}")
    e(f"s_cbranch_scc1 {name}_loop")
    e("s_nop 15")
    es = 2 if ctype == "bf16" else 4
    e("v_lshlrev_b32 v7, 2, v2")
    e("v_add_u32 v7, s40, v7")
    e(f"s_mov_b32 s42, {ldc}")
    e("v_mul_lo_u32 v7, v7, s42")
    e("v_add_u32 v7, v7, v1")
    e("v_add_u32 v7, s41, v7")
    for mi in range(2):
        for ni in range(2):
            if shift:
                e("s_lshl_b32 s44, s2, 1")
                e(f"s_add_u32 s44, s44, {ni}")
                e("s_mul_i32 s44, s44, 57")
                e("s_lshr_b32 s44, s44, 9")
                e("s_lshr_b32 s45, s44, 1")
                e("s_add_u32 s45, s45, 1")
                e(f"s_mul_i32 s45, s45, {ldc}")
                e("s_and_b32 s44, s44, 1")
                e("s_sub_u32 s46, 0, s45")
                e("s_cmp_eq_u32 s44, 1")
                e("s_cselect_b32 s45, s46, s45")
            for r in range(4):
                acc = 32 + (mi*2+ni)*4 + r
                eo = (mi*16 + r) * ldc + ni*16
                e(f"v_add_u32 v24, {eo}, v7")
                for i, rr in enumerate(res):
                    res_es = 4 if rr == "NUM" else 2
                    e(f"v_lshlrev_b32 v25, {2 if res_es==4 else 1}, v24")
                    if res_es == 4:
                        e(f"buffer_load_dword v{26+i}, v25, s[{20+4*i}:{23+4*i}], 0 offen")
                    else:
                        e(f"buffer_load_ushort v{26+i}, v25, s[{20+4*i}:{23+4*i}], 0 offen")
                e("s_waitcnt vmcnt(0)")
                if epi == "gelu": gelu(acc, 28, 29)
                elif epi == "phi": phi(acc, 28, 29)
                elif epi == "div":
                    e(f"v_add_f32 v{acc}, {f2u(1e-6):#x}, v{acc}")
                    e(f"v_rcp_f32 v{acc}, v{acc}")
                    e("s_nop 0")
                    e(f"v_mul_f32 v{acc}, v{acc}, v26")
                if epi != "div":
                    for i, rr in enumerate(res):
                        e(f"v_lshlrev_b32 v{26+i}, 16, v{26+i}")
                        e(f"v_add_f32 v{acc}, v{acc}, v{26+i}")
                if shift:
                    e(f"v_add_u32 v24, s45, v24")
                e(f"v_lshlrev_b32 v25, {1 if es==2 else 2}, v24")
                if es == 2:
                    e(f"v_cvt_pk_bf16_f32 v{acc}, v{acc}, v{acc}")
                    e(f"buffer_store_short v{acc}, v25, s[16:19], 0 offen")
                else:
                    e(f"buffer_store_dword v{acc}, v25, s[16:19], 0 offen")
    lab(f"{name}_done")
    e("s_endpgm")

def k_fill(name):
    kernel(name, (256, 1, 1), 256)
    e("s_cmp_ge_u32 s2, 256")
    e(f"s_cbranch_scc1 {name}_done")
    srd(8, "VT", 576*2048*2); srd(12, "HSIN")
    e("s_lshl_b32 s16, s2, 8")
    e("v_add_u32 v1, s16, v0")
    e("v_lshlrev_b32 v2, 1, v1")
    e("v_mov_b32 v3, 0x3f80")
    e("buffer_store_short v3, v2, s[8:11], 0 offen")
    e("v_mov_b32 v3, 0")
    e("v_cmp_gt_u32 vcc, 1152, v1")
    e("s_and_saveexec_b64 s[20:21], vcc")
    e(f"s_cbranch_execz {name}_done")
    e("buffer_store_short v3, v2, s[12:15], 0 offen")
    e(f"v_add_u32 v2, {2046*1152}, v2")
    e("buffer_store_short v3, v2, s[12:15], 0 offen")
    lab(f"{name}_done")
    e("s_endpgm")

def k_bd(name):
    kernel(name, (3, 576, 1), 256, ydim=True)
    e("s_cmp_ge_u32 s2, 3")
    e(f"s_cbranch_scc1 {name}_done")
    srd(8, "KV"); srd(12, "BDt"); srd(16, "Zt")
    e("s_lshl_b32 s20, s2, 8")
    e("v_add_u32 v1, s20, v0")
    e("v_cmp_gt_u32 vcc, 576, v1")
    e("s_and_saveexec_b64 s[22:23], vcc")
    e(f"s_cbranch_execz {name}_done")
    e("v_mul_u32_u24 v2, 3641, v1")
    e("v_lshrrev_b32 v2, 16, v2")
    e("s_mul_i32 s21, s3, 3641")
    e("s_lshr_b32 s21, s21, 16")
    e("v_mul_u32_u24 v3, 608, v1")
    e("v_add_u32 v4, s3, v3")
    e("v_lshlrev_b32 v4, 2, v4")
    e("buffer_load_dword v5, v4, s[8:11], 0 offen")
    e("v_add_u32 v4, 576, v3")
    e("v_lshlrev_b32 v4, 2, v4")
    e("buffer_load_dword v6, v4, s[8:11], 0 offen")
    e("v_cmp_eq_u32 vcc, s21, v2")
    e("s_waitcnt vmcnt(0)")
    e("v_cndmask_b32 v5, 0, v5, vcc")
    e("v_cndmask_b32 v6, 0, v6, vcc")
    e("v_cvt_pk_bf16_f32 v5, v5, v5")
    e("v_cvt_pk_bf16_f32 v6, v6, v6")
    e("s_mul_i32 s21, s3, 576")
    e("v_add_u32 v4, s21, v1")
    e("v_lshlrev_b32 v4, 1, v4")
    e("buffer_store_short v5, v4, s[12:15], 0 offen")
    e("buffer_store_short v6, v4, s[16:19], 0 offen")
    lab(f"{name}_done")
    e("s_endpgm")

def k_empty(name):
    kernel(name, (256,1,1), 256)
    e("s_endpgm")

nempty = int(sys.argv[2]) if len(sys.argv) > 2 else 0

k_transpose("tq_kernel", "wqkv", 0, 1728, 576, 1728, "WqkvT")
k_transpose("to_kernel", "wo", 0, 576, 576, 576, "WoT")
k_transpose("t1_kernel", "w1", 0, 576, 576, 576, "W1T")
k_transpose("t2_kernel", "w2", 0, 576, 576, 576, "W2T")
k_transpose("t3_kernel", "w3", 0, 4608, 576, 4608, "W3T")
k_transpose("t4_kernel", "w4", 0, 576, 4608, 576, "W4T")
k_fill("fill_kernel")
k_ln("ln0_kernel", "x", "A0")
k_gemm("gq_kernel", "A0", 576, 0, "WqkvT", 576, 0, S, 576, 576, "PQ", 576, "bf16", epi="phi")
k_gemm("gk_kernel", "WqkvT", 576, 576*576*2, "A0", 576, 0, 576, S, 576, "PKT", S, "bf16", epi="phi")
k_gemm("gv_kernel", "WqkvT", 576, 2*576*576*2, "A0", 576, 0, 576, S, 576, "VT", S, "bf16")
k_gemm("gkv_kernel", "PKT", S, 0, "VT", S, 0, 576, 608, S, "KV", 608, "f32")
k_bd("bd_kernel")
k_gemm("gnum_kernel", "PQ", 576, 0, "BDt", 576, 0, S, 576, 576, "NUM", 576, "f32")
k_gemm("gden_kernel", "PQ", 576, 0, "Zt", 576, 0, S, 576, 576, "O", 576, "bf16", epi="div", res=("NUM",))
k_gemm("gwo_kernel", "O", 576, 0, "WoT", 576, 0, S, 576, 576, "H", 576, "bf16", res=("x",))
k_ln("ln12_kernel", "H", "LN1", "LN2")
k_gemm("gw1_kernel", "LN2", 576, 0, "W1T", 576, 0, S, 576, 576, "HSIN", 576, "bf16", epi="gelu", shift=True)
k_gemm("gw2_kernel", "HSIN", 576, 0, "W2T", 576, 0, S, 576, 576, "X1", 576, "bf16", res=("LN1",))
k_ln("ln3_kernel", "X1", "LN3")
k_gemm("gw3_kernel", "LN3", 576, 0, "W3T", 576, 0, S, F, 576, "HH", F, "bf16", epi="gelu")
k_gemm("gw4_kernel", "HH", F, 0, "W4T", F, 0, S, 576, F, "out", 576, "bf16", res=("X1", "H"))
for i in range(nempty): k_empty(f"empty{i}_kernel")

hdr = open("cdna_kernels/" + NAME + ".s.ref").read().split("; Override launch")[0]
out = hdr + "\n".join(launches) + "\n" + '.amdgcn_target "amdgcn-amd-amdhsa--gfx950"\n.text\n' + "\n".join(body) + '\n.section .rodata,"a"\n' + "\n".join(descs) + "\n"
open(sys.argv[1], "w").write(out)
json.dump(WS, open("ws_v0.json", "w"))
```

```python
import struct, json
NAME = "sequential_preLN__linear_attn_block__mixer_s_mlp__prompt"
S, D, F = 2048, 576, 4608
IN = dict(x=0, wqkv=8, wo=16, bx=24, w1=32, w2=40, w3=48, w4=56, out=64, dbg=72, ws=80)
INSZ = dict(x=S*D*2, wqkv=D*3*D*2, wo=D*D*2, w1=D*D*2, w2=D*D*2, w3=D*F*2, w4=D*F*2, out=S*D*2, dbg=256)

def f2u(x): return struct.unpack("<I", struct.pack("<f", x))[0]
def hx(x): return f"{f2u(x):#x}"

class Gen:
    def __init__(self):
        self.launches = []; self.body = []; self.descs = []; self.WS = {}; self.off = 0
    def wsalloc(self, name, nbytes, align=0x10000):
        self.off = (self.off + align - 1) // align * align
        self.WS[name] = (self.off, nbytes); self.off += nbytes
    def e(self, s):
        import re
        for l in s.split("\n"):
            l = l.strip()
            if not l: continue
            m = re.match(r"s_mov_b64 exec, (0x[0-9a-fA-F]+)\s*(;.*)?$", l)
            if m:
                v = int(m.group(1), 16)
                self.body.append(f"    s_mov_b32 exec_lo, {v & 0xffffffff:#x}")
                self.body.append(f"    s_mov_b32 exec_hi, {v >> 32:#x}")
                continue
            m = re.search(r"^ds_\w+ .* offset:(\d+)", l)
            if m and int(m.group(1)) > 65535: raise ValueError("LDS offset too large: " + l)
            self.body.append("    " + l)
    def lab(self, s): self.body.append(s + ":")
    def kernel(self, name, grid, block, vgprs=64, agprs=0, lds=0, ydim=False, sgprs=96, launch=True):
        if launch:
            self.launches.append(f"; @launch kernel={name} grid=({grid[0]},{grid[1]},{grid[2]}) block=({block},1,1) lds={lds}")
        self.body.append(f".globl {name}\n.p2align 8\n.type {name},@function\n{name}:")
        acc = (vgprs + 3) // 4 * 4
        tot = acc + agprs if agprs else vgprs
        self.descs.append(f""".p2align 6
.amdhsa_kernel {name}
  .amdhsa_next_free_vgpr {tot}
  .amdhsa_next_free_sgpr {sgprs}
  .amdhsa_accum_offset {acc}
  .amdhsa_group_segment_fixed_size 0
  .amdhsa_kernarg_size 88
  .amdhsa_user_sgpr_count 2
  .amdhsa_user_sgpr_kernarg_segment_ptr 1
  .amdhsa_system_sgpr_workgroup_id_x 1
  .amdhsa_system_sgpr_workgroup_id_y {1 if ydim else 0}
  .amdhsa_float_denorm_mode_32 3
.end_amdhsa_kernel""")
    def ptr(self, sreg, buf):
        self.e(f"s_load_dwordx2 s[{sreg}:{sreg+1}], s[0:1], {IN[buf]}")
    def srd_from(self, sreg, pbase, off, size):
        if off:
            self.e(f"s_add_u32 s{sreg}, s{pbase}, {off:#x}")
            self.e(f"s_addc_u32 s{sreg+1}, s{pbase+1}, 0")
        else:
            self.e(f"s_mov_b32 s{sreg}, s{pbase}")
            self.e(f"s_mov_b32 s{sreg+1}, s{pbase+1}")
        self.e(f"s_mov_b32 s{sreg+2}, {size:#x}")
        self.e(f"s_mov_b32 s{sreg+3}, 0x20000")
    def srd(self, sreg, buf, off=0, size=None):
        if buf in IN:
            slot = IN[buf]; base = off; sz = (INSZ[buf] - off) if size is None else size
        else:
            slot = IN["ws"]; base = self.WS[buf][0] + off; sz = (self.WS[buf][1] - off) if size is None else size
        self.e(f"s_load_dwordx2 s[4:5], s[0:1], {slot}")
        self.e("s_waitcnt lgkmcnt(0)")
        self.srd_from(sreg, 4, base, sz)
    def ws_srd(self, sreg, pws, name, size=None):
        o, sz = self.WS[name]
        self.srd_from(sreg, pws, o, sz if size is None else size)
    def write(self, path, wsjson=None):
        hdr = open("cdna_kernels/" + NAME + ".s.ref").read().split("; Override launch")[0]
        out = hdr + "\n".join(self.launches) + "\n" + '.amdgcn_target "amdgcn-amd-amdhsa--gfx950"\n.text\n' + "\n".join(self.body) + '\n.section .rodata,"a"\n' + "\n".join(self.descs) + "\n"
        open(path, "w").write(out)
        if wsjson: json.dump(self.WS, open(wsjson, "w"))
```

```python
from gl import *
C1 = 2 * 0.7978845608028654 * 1.4426950408889634
C2 = C1 * 0.044715
WP_WAVE = 108 * 1024
FMSZ = S * D * 2
STAMP = 0
MAPR = 16
SPIN_MAX = 400000
P_WS = 4
PTR = dict(x=60, wqkv=62, wo=64, w1=66, w2=68, w3=70, w4=72, out=76, dbg=78)
S_W = 22
SRD_CNT = 84
SRD_DBG = 88
VST = 167
CNT_B, CNT_C, CNT_D, CNT_E, CNT_G = 0, 32, 64, 96, 128
NCNT = 160

class M:
    def __init__(self, g, name):
        self.g = g; self.name = name; self.n = 0; self.nst = 0
    def lab(self, base):
        self.n += 1
        return f"{self.name}_{base}{self.n}"

def stamp(m, label=None):
    if not STAMP: return
    g = m.g
    g.e(f"s_memtime s[80:81]\ns_waitcnt lgkmcnt(0)\nv_writelane_b32 v{VST}, s80, {m.nst}")
    m.names = getattr(m, "names", []); m.names.append(label or str(m.nst))
    m.nst += 1

def stamp_flush(m, wgs=(0,)):
    if not STAMP: return
    g = m.g; e = g.e
    for k, wg in enumerate(wgs):
        L = m.lab("sf")
        e(f"""s_cmp_lg_u32 s2, {wg}
        s_cbranch_scc1 {L}
        s_lshl_b32 s80, s{S_W}, 8
        s_add_u32 s80, s80, {4096 + k*4096}
        v_and_b32 v1, 63, v0
        v_lshlrev_b32 v1, 2, v1
        s_mov_b32 s{SRD_DBG+2}, 0x100000
        buffer_store_dword v{VST}, v1, s[{SRD_DBG}:{SRD_DBG+3}], s80 offen""")
        g.lab(L)

def prologue(m, nwg=256):
    g = m.g; e = g.e
    e(f"s_cmp_ge_u32 s2, {nwg}\ns_cbranch_scc1 {m.name}_done")
    e(f"""s_load_dwordx16 s[{PTR['x']-4}:{PTR['x']+11}], s[0:1], 0
    s_load_dwordx4 s[{PTR['out']}:{PTR['out']+3}], s[0:1], 64
    s_load_dwordx2 s[4:5], s[0:1], 80""".replace(f"s_load_dwordx16 s[{PTR['x']-4}:{PTR['x']+11}], s[0:1], 0", "s_load_dwordx16 s[36:51], s[0:1], 0"))
    e(f"""v_lshrrev_b32 v1, 6, v0
    s_nop 0
    v_readfirstlane_b32 s{S_W}, v1""")
    if STAMP: e(f"v_mov_b32 v{VST}, 0")
    e("s_waitcnt lgkmcnt(0)")
    for nm, idx in (("x", 0), ("wqkv", 1), ("wo", 2), ("w1", 4), ("w2", 5), ("w3", 6), ("w4", 7)):
        e(f"s_mov_b64 s[{PTR[nm]}:{PTR[nm]+1}], s[{36+2*idx}:{37+2*idx}]")
    g.ws_srd(SRD_CNT, P_WS, "CNT")
    g.srd_from(SRD_DBG, PTR["dbg"], 0, 256)

def init_counters(m, extra_zero=None):
    g = m.g; e = g.e
    L = m.lab("ic")
    e(f"""s_cmp_lg_u32 s2, 0
    s_cbranch_scc1 {L}
    v_lshlrev_b32 v1, 4, v0
    v_mov_b32 v4, 0
    v_mov_b32 v5, 0
    v_mov_b32 v6, 0
    v_mov_b32 v7, 0
    buffer_store_dwordx4 v[4:7], v1, s[{SRD_CNT}:{SRD_CNT+3}], 0 offen sc1
    v_add_u32 v1, {768*16}, v1
    buffer_store_dwordx4 v[4:7], v1, s[{SRD_CNT}:{SRD_CNT+3}], 0 offen sc1""")
    if extra_zero:
        g.ws_srd(8, P_WS, extra_zero)
        e("v_lshlrev_b32 v1, 4, v0")
        for k in range(5):
            e(f"buffer_store_dwordx4 v[4:7], v1, s[8:11], 0 offen sc1\nv_add_u32 v1, {768*16}, v1")
    e(f"""s_waitcnt vmcnt(0)
    s_barrier
    s_cmp_lg_u32 s{S_W}, 0
    s_cbranch_scc1 {L}
    v_mov_b32 v4, 1
    v_mov_b32 v1, 0
    s_mov_b64 exec, 1
    buffer_store_dword v4, v1, s[{SRD_DBG}:{SRD_DBG+3}], 0 offen sc1
    s_mov_b64 exec, -1""")
    g.lab(L)

def poll(m, srd, voff_setup, nlanes, target, tmp=1):
    g = m.g; e = g.e
    L = m.lab("pl")
    e(voff_setup)
    e(f"s_mov_b64 exec, {(1 << nlanes) - 1:#x}" if nlanes < 32 else "s_mov_b64 exec, -1")
    e("s_mov_b32 s82, 0")
    g.lab(L)
    e(f"""buffer_load_dword v{tmp+1}, v{tmp}, s[{srd}:{srd+3}], 0 offen sc1
    s_waitcnt vmcnt(0)
    v_cmp_gt_u32 vcc, {target}, v{tmp+1}
    s_add_u32 s82, s82, 1
    s_cmp_gt_u32 s82, {SPIN_MAX}
    s_cbranch_scc1 {L}_x
    s_cbranch_vccz {L}_x
    s_sleep 1
    s_branch {L}""")
    g.lab(L + "_x")
    e("s_mov_b64 exec, -1")

def wait_ready(m):
    g = m.g; e = g.e
    L = m.lab("wr")
    e(f"s_cmp_lg_u32 s{S_W}, 0\ns_cbranch_scc1 {L}")
    poll(m, SRD_DBG, "v_mov_b32 v1, 0", 1, 1)
    g.lab(L)

def signal(m, scnt):
    g = m.g; e = g.e
    L = m.lab("sg")
    e(f"""s_waitcnt vmcnt(0)
    s_barrier
    s_cmp_lg_u32 s{S_W}, 0
    s_cbranch_scc1 {L}
    s_lshl_b32 s82, s{scnt}, 7
    v_mov_b32 v1, s82
    v_mov_b32 v2, 1
    s_mov_b64 exec, 1
    buffer_atomic_add v2, v1, s[{SRD_CNT}:{SRD_CNT+3}], 0 offen sc1
    s_mov_b64 exec, -1""")
    g.lab(L)

def wait_cnt(m, scnt, n, target, lo=None, hi=None, extra=None):
    g = m.g; e = g.e
    L = m.lab("wc")
    e(f"s_cmp_lg_u32 s{S_W}, 0\ns_cbranch_scc1 {L}")
    setup = f"v_and_b32 v1, 63, v0\nv_add_u32 v2, s{scnt}, v1"
    if lo is not None:
        setup += f"\nv_max_i32 v2, {lo}, v2\nv_min_i32 v2, {hi}, v2"
    nl = n
    if extra is not None:
        setup += f"\nv_cmp_eq_u32 vcc, {n}, v1\nv_mov_b32 v1, s{extra}\ns_nop 0\nv_cndmask_b32 v2, v2, v1, vcc"
        nl = n + 1
    setup += "\nv_lshlrev_b32 v1, 7, v2"
    poll(m, SRD_CNT, setup, nl, target)
    g.lab(L)
    e("s_barrier")

W_PITCH = 160
LDS_W = 0
LDS_RED = 97280
RED_SZ = 12 * 5 * 1024
LDS_TAB = LDS_RED + RED_SZ
LDS_TOTAL = 163840

def midmap(g):
    g.e("""s_and_b32 s20, s2, 7
    s_lshr_b32 s21, s2, 3
    s_lshl_b32 s20, s20, 2
    s_and_b32 s23, s21, 3
    s_add_u32 s20, s20, s23
    s_lshr_b32 s21, s21, 2""")

def efmap(g):
    R = MAPR; J = 32 // R
    lr = R.bit_length() - 1; lj = J.bit_length() - 1
    njg = 8 // J; lnjg = njg.bit_length() - 1
    g.e(f"""s_and_b32 s21, s2, 7
    s_lshr_b32 s23, s2, 3
    s_lshr_b32 s20, s21, {lnjg}
    s_lshl_b32 s20, s20, {lr}
    s_and_b32 s19, s23, {R-1}
    s_add_u32 s20, s20, s19
    s_and_b32 s21, s21, {njg-1}
    s_lshl_b32 s21, s21, {lj}
    s_lshr_b32 s23, s23, {lr}
    s_add_u32 s21, s21, s23""")

def lanes(g):
    g.e("""v_and_b32 v1, 63, v0
    v_lshlrev_b32 v2, 4, v1
    v_and_b32 v3, 15, v1
    v_lshrrev_b32 v4, 4, v1""")

def xsum_g(g, v, t):
    g.e(f"""v_mov_b32 v{t}, v{v}
    s_nop 1
    v_permlane16_swap_b32 v{t}, v{v}
    s_nop 1
    v_add_f32 v{v}, v{v}, v{t}
    v_mov_b32 v{t}, v{v}
    s_nop 1
    v_permlane32_swap_b32 v{t}, v{v}
    s_nop 1
    v_add_f32 v{v}, v{v}, v{t}""")

def ss_load(g, dst, srd, srow, tmp):
    g.e(f"""v_add_u32 v{tmp}, s{srow}, v3
    v_lshlrev_b32 v{tmp}, 7, v{tmp}
    v_lshl_add_u32 v{tmp}, v4, 5, v{tmp}
    v_cmp_eq_u32 vcc, 3, v4
    v_mov_b32 v{tmp+1}, 0x7fffff00
    s_nop 0
    v_cndmask_b32 v{tmp}, v{tmp}, v{tmp+1}, vcc
    buffer_load_dwordx4 v[{dst}:{dst+3}], v{tmp}, s[{srd}:{srd+3}], 0 offen sc1
    buffer_load_dwordx4 v[{dst+4}:{dst+7}], v{tmp}, s[{srd}:{srd+3}], 0 offen offset:16 sc1""")

def ss_reduce(g, a, t):
    for k in range(1, 8): g.e(f"v_add_f32 v{a}, v{a}, v{a+k}")
    xsum_g(g, a, t)

def wtile_dma_raw(g, srd, s_src, tmp, mask9=False):
    e = g.e
    e(f"s_lshl_b32 s40, s{S_W}, 9")
    e(f"s_lshl_b32 s41, s{S_W}, 13")
    for m_ in range(8):
        e(f"v_add_u32 v{tmp}, s40, v1")
        if m_: e(f"v_add_u32 v{tmp}, {64*m_}, v{tmp}")
        e(f"""v_mul_u32_u24 v{tmp+1}, 6554, v{tmp}
        v_lshrrev_b32 v{tmp+1}, 16, v{tmp+1}
        v_mul_u32_u24 v{tmp+2}, 10, v{tmp+1}
        v_sub_u32 v{tmp}, v{tmp}, v{tmp+2}
        v_mul_u32_u24 v{tmp+1}, 1152, v{tmp+1}
        v_lshl_add_u32 v{tmp+1}, v{tmp}, 4, v{tmp+1}
        s_add_u32 m0, s41, {LDS_W + m_*1024}""")
        if mask9:
            e(f"v_cmp_ne_u32 vcc, 9, v{tmp}\ns_nop 0\ns_mov_b64 exec, vcc")
        else:
            e("s_nop 0")
        e(f"buffer_load_dwordx4 v{tmp+1}, s[{srd}:{srd+3}], s{s_src} offen lds")
        if mask9: e("s_mov_b64 exec, -1")

def gemm_stage(g, XF, AF, ACC, vtr, nks=6):
    e = g.e
    def rd(i, p):
        for nt in range(5):
            a = AF + p*20 + nt*4
            e(f"ds_read_b64_tr_b16 v[{a}:{a+1}], v{vtr} offset:{i*32*W_PITCH + nt*32}")
            e(f"ds_read_b64_tr_b16 v[{a+2}:{a+3}], v{vtr} offset:{i*32*W_PITCH + nt*32 + 8*W_PITCH}")
    rd(0, 0)
    for i in range(nks):
        p = i & 1
        if i + 1 < nks:
            rd(i + 1, 1 - p)
            e("s_waitcnt lgkmcnt(10)")
        else:
            e("s_waitcnt lgkmcnt(0)")
        for nt in range(5):
            a = AF + p*20 + nt*4; c = ACC + nt*4
            src = f"v[{c}:{c+3}]" if i else "0"
            e(f"v_mfma_f32_16x16x32_bf16 v[{c}:{c+3}], v[{a}:{a+3}], v[{XF+4*i}:{XF+4*i+3}], {src}")

def tr_base(g, v, tmp, s_ks0):
    g.e(f"""v_lshrrev_b32 v{v}, 5, v1
    v_lshlrev_b32 v{v}, 4, v{v}
    v_bfe_u32 v{tmp}, v1, 4, 1
    v_lshl_add_u32 v{v}, v{tmp}, 2, v{v}
    v_bfe_u32 v{tmp}, v1, 2, 2
    v_add_u32 v{v}, v{v}, v{tmp}
    v_mul_u32_u24 v{v}, {W_PITCH}, v{v}
    v_and_b32 v{tmp}, 3, v1
    v_lshl_add_u32 v{v}, v{tmp}, 3, v{v}
    s_mul_i32 s31, s{s_ks0}, {32*W_PITCH}
    v_add_u32 v{v}, s31, v{v}""")

def img_dma(g, region, nbytes_per_ng):
    e = g.e
    N = nbytes_per_ng // 1024
    g.ws_srd(12, P_WS, region)
    e(f"""s_mul_i32 s40, s21, {nbytes_per_ng}
    s_lshl_b32 s41, s{S_W}, 10""")
    for m_ in range(8):
        if 12*m_ + 11 >= N:
            e(f"""s_add_u32 s42, s41, {12*m_*1024}
            s_cmp_ge_u32 s42, {N*1024}
            s_cselect_b32 s43, {12*1024}, 0
            s_sub_u32 s42, s42, s43""")
        else:
            e(f"s_add_u32 s42, s41, {12*m_*1024}")
        e(f"""s_mov_b32 m0, s42
        s_add_u32 s43, s40, s42
        buffer_load_dwordx4 v2, s[12:15], s43 offen lds""")

def unit_off(g, vout, tmp):
    g.e(f"""v_and_b32 v{tmp}, 1, v4
    v_lshlrev_b32 v{vout}, 9, v{tmp}
    v_lshrrev_b32 v{tmp}, 1, v4
    v_lshl_add_u32 v{vout}, v{tmp}, 8, v{vout}
    v_lshl_add_u32 v{vout}, v3, 4, v{vout}""")

def swap_pair(g, a):
    g.e(f"s_nop 1\nv_permlane16_swap_b32 v{a}, v{a+2}\nv_permlane16_swap_b32 v{a+1}, v{a+3}\ns_nop 1")

def red_write(g, ACC, tmp):
    e = g.e
    e(f"s_mul_i32 s40, s{S_W}, 5120")
    e(f"s_add_u32 s40, s40, {LDS_RED}")
    e(f"v_add_u32 v{tmp}, s40, v2")
    e("s_nop 7")
    for nt in range(5):
        e(f"ds_write_b128 v{tmp}, v[{ACC+4*nt}:{ACC+4*nt+3}] offset:{nt*1024}")

def red_addr(g, v):
    g.e(f"""s_mul_i32 s32, s24, 5120
    s_lshl_b32 s33, s25, 11
    s_add_u32 s33, s32, s33
    s_add_u32 s33, s33, {LDS_RED}
    v_add_u32 v{v}, s33, v2""")

def red_read(g, dst, vaddr, nt_off):
    for k in range(3):
        g.e(f"ds_read_b128 v[{dst+4*k}:{dst+4*k+3}], v{vaddr} offset:{k*4*5120 + nt_off}")

def fm2_tile_off(g, vout, s_q0, tmp):
    g.e(f"""v_add_u32 v{tmp}, s{s_q0}, v4
    v_lshrrev_b32 v{vout}, 3, v{tmp}
    v_lshlrev_b32 v{vout}, 10, v{vout}
    v_and_b32 v{tmp+1}, 3, v{tmp}
    v_lshl_add_u32 v{vout}, v{tmp+1}, 8, v{vout}
    v_bfe_u32 v{tmp+1}, v{tmp}, 2, 1
    v_lshl_add_u32 v{vout}, v{tmp+1}, 3, v{vout}
    v_lshl_add_u32 v{vout}, v3, 4, v{vout}""")

def unpack4(g, src, dst):
    g.e(f"""v_lshlrev_b32 v{dst}, 16, v{src}
    v_and_b32 v{dst+1}, 0xffff0000, v{src}
    v_lshlrev_b32 v{dst+2}, 16, v{src+1}
    v_and_b32 v{dst+3}, 0xffff0000, v{src+1}""")

def gelu4(g, c, t, k):
    e = g.e
    for r in range(4): e(f"v_mul_f32 v{t+r}, v{c+r}, v{c+r}")
    for r in range(4): e(f"v_fma_f32 v{t+r}, v{t+r}, v{k+1}, v{k}")
    for r in range(4): e(f"v_mul_f32 v{t+r}, v{t+r}, v{c+r}")
    for r in range(4): e(f"v_exp_f32 v{t+r}, v{t+r}")
    for r in range(4): e(f"v_fma_f32 v{t+r}, v{t+r}, v{k+2}, v{k+2}")
    for r in range(4): e(f"v_rcp_f32 v{t+r}, v{t+r}")
    for r in range(4): e(f"v_mul_f32 v{t+r}, v{t+r}, v{c+r}")
    e(f"v_cvt_pk_bf16_f32 v{t}, v{t}, v{t+1}")
    e(f"v_cvt_pk_bf16_f32 v{t+1}, v{t+2}, v{t+3}")

def mid_ids(g):
    midmap(g)
    g.e(f"""s_and_b32 s24, s{S_W}, 3
    s_lshr_b32 s25, s{S_W}, 2
    s_lshl_b32 s26, s20, 2
    s_add_u32 s26, s26, s24
    s_lshl_b32 s30, s26, 4""")


IMG_SZ = 576 * 160
IMGO_SZ = 608 * 160
LDS_KV = LDS_RED

def own_mask(g, name):
    L = name + "_om"
    g.e(f"""s_cmp_eq_u32 s25, 2
    s_cbranch_scc0 {L}
    s_mov_b64 exec, 0xffff""")
    g.lab(L)

def sum3(g, a):
    for r in range(4): g.e(f"v_add_f32 v{a+r}, v{a+r}, v{a+4+r}")
    for r in range(4): g.e(f"v_add_f32 v{a+r}, v{a+r}, v{a+8+r}")

def mean_extra_read(g, dst, tmp):
    g.e(f"""s_mul_i32 s32, s24, 5120
    s_add_u32 s32, s32, {LDS_RED + 4*1024 + 32*16}
    v_lshlrev_b32 v{tmp}, 4, v3
    v_add_u32 v{tmp}, s32, v{tmp}""")
    for k in range(3):
        g.e(f"ds_read_b64 v[{dst+2*k}:{dst+2*k+1}], v{tmp} offset:{k*4*5120}")

def mean_extra_sum(g, m1):
    g.e(f"""v_add_f32 v{m1}, v{m1}, v{m1+1}
    v_add_f32 v{m1+2}, v{m1+2}, v{m1+3}
    v_add_f32 v{m1+4}, v{m1+4}, v{m1+5}
    v_add_f32 v{m1}, v{m1}, v{m1+2}
    v_add_f32 v{m1}, v{m1}, v{m1+4}""")

def ss_store(g, v, srd, tmp):
    xsum_g(g, v, tmp)
    g.e(f"""s_mul_i32 s33, s21, 3
    s_add_u32 s33, s33, s25
    s_lshl_b32 s33, s33, 2
    v_add_u32 v{tmp}, s30, v3
    v_lshlrev_b32 v{tmp}, 7, v{tmp}
    v_add_u32 v{tmp}, s33, v{tmp}
    s_mov_b64 exec, 0xffff
    buffer_store_dword v{v}, v{tmp}, s[{srd}:{srd+3}], 0 offen sc1
    s_mov_b64 exec, -1""")

def tile_soff(g, s):
    g.e(f"""s_mul_i32 s{s}, s26, 72
    s_mul_i32 s33, s21, 9
    s_add_u32 s{s}, s{s}, s33
    s_lshl_b32 s33, s25, 2
    s_add_u32 s{s}, s{s}, s33
    s_lshl_b32 s{s}, s{s}, 8""")

def finish_signal(m, cnt_base, n_after):
    g = m.g; e = g.e
    L = m.lab("sg")
    e(f"""s_waitcnt vmcnt({n_after})
    s_barrier
    s_cmp_lg_u32 s{S_W}, 0
    s_cbranch_scc1 {L}
    s_add_u32 s82, s20, {cnt_base}
    s_lshl_b32 s82, s82, 7
    v_mov_b32 v110, s82
    v_mov_b32 v111, 1
    s_mov_b64 exec, 1
    buffer_atomic_add v111, v110, s[{SRD_CNT}:{SRD_CNT+3}], 0 offen sc1
    s_mov_b64 exec, -1""")
    g.lab(L)

def phase_b(m, first=False, prefetch_next=True):
    g = m.g; e = g.e; name = m.lab("B")
    PQF, KT, A0, A1, D0, BFR, LFT, AF, ACC, C1R = 8, 56, 72, 76, 80, 96, 100, 104, 124, 144
    XR, MX = 148, 152
    VK0, VK1, VTR = 5, 153, 6
    lanes(g); mid_ids(g)
    if first:
        img_dma(g, "IMGO", IMGO_SZ)
    else:
        e(f"s_mov_b32 s33, {CNT_G}")
        wait_cnt(m, 33, 16, 16)
        lanes(g)
        img_dma(g, "IMGO", IMGO_SZ)
    stamp(m, "B:go")
    g.ws_srd(8, P_WS, "KVT")
    e(f"""s_mul_i32 s40, s{S_W}, 5120
    s_add_u32 m0, s40, {LDS_KV}
    s_nop 0""")
    for i in range(5):
        if i == 4: e(f"s_add_u32 m0, s40, {LDS_KV + 4096}\ns_add_u32 s40, s40, 4096\ns_nop 0")
        e(f"buffer_load_dwordx4 v2, s[8:11], s40 offen offset:{(i%4)*1024} sc1 lds")
    e("""s_mov_b32 s27, 0
    s_mov_b32 s28, 0
    s_cmp_eq_u32 s25, 1
    s_cselect_b32 s27, 12, s27
    s_cselect_b32 s28, 7, s28
    s_cmp_eq_u32 s25, 2
    s_cselect_b32 s27, 22, s27
    s_cselect_b32 s28, 13, s28""")
    g.ws_srd(16, P_WS, "PQP")
    e("""s_lshl_b32 s34, s26, 5
    s_add_u32 s34, s34, s27
    s_mul_i32 s34, s34, 768""")
    for i in range(12):
        if i in (5, 10): e("s_add_u32 s34, s34, 3840")
        e(f"buffer_load_dwordx4 v[{PQF+4*i}:{PQF+4*i+3}], v2, s[16:19], s34 offen offset:{(i%5)*768} sc1")
    unit_off(g, 7, 110)
    e(f"""v_and_b32 v110, 1, v4
    v_lshlrev_b32 v111, 5, v110
    v_lshrrev_b32 v110, 1, v4
    v_lshl_add_u32 v111, v110, 4, v111
    v_add_u32 v110, s30, v3
    v_mul_u32_u24 v112, 1152, v110
    v_add_u32 v112, v112, v111
    s_mul_i32 s35, s21, 144
    s_lshl_b32 s33, s25, 6
    s_add_u32 s35, s35, s33""")
    g.srd_from(16, PTR["x"], 0, FMSZ)
    e(f"buffer_load_dwordx4 v[{XR}:{XR+3}], v112, s[16:19], s35 offen")
    g.ws_srd(16, P_WS, "XST")
    e(f"v_lshlrev_b32 v110, 2, v110\nbuffer_load_dword v{MX}, v110, s[16:19], 0 offen sc1")
    e(f"""v_mul_u32_u24 v{VK0}, 96, v3
    v_lshl_add_u32 v{VK0}, v4, 5, v{VK0}
    v_mov_b32 v110, {19*96}
    v_cmp_gt_u32 vcc, 3, v4
    s_mov_b64 s[36:37], vcc
    s_nop 0
    v_cndmask_b32 v{VK0}, v110, v{VK0}, vcc
    s_mul_i32 s38, s27, 1920
    s_add_u32 s38, s38, {LDS_KV}
    v_add_u32 v{VK0}, s38, v{VK0}
    v_and_b32 v111, 3, v3                       ; m&3
    v_lshrrev_b32 v112, 2, v3                   ; m>>2""")
    for gh in range(4):
        v = VK1 + gh
        e(f"""v_mov_b32 v{v}, 19
        v_add_u32 v113, 16, v111
        v_cmp_eq_u32 vcc, {gh}, v112
        s_mov_b64 s[38:39], vcc
        v_cmp_gt_u32 vcc, 2, v111
        s_and_b64 vcc, vcc, s[38:39]
        s_nop 1
        v_cndmask_b32 v{v}, v{v}, v113, vcc
        v_cmp_eq_u32 vcc, 2, v111
        s_nop 1
        v_cndmask_b32 v{v}, v{v}, 18, vcc
        v_mul_u32_u24 v{v}, 96, v{v}
        v_lshl_add_u32 v{v}, v4, 5, v{v}
        v_cndmask_b32 v{v}, v110, v{v}, s[36:37]""")
        e(f"s_mul_i32 s38, s27, 1920\ns_add_u32 s38, s38, {LDS_KV}\nv_add_u32 v{v}, s38, v{v}")
    tr_base(g, VTR, 110, 28)
    e(f"""v_mov_b32 v{C1R}, 0
    v_mov_b32 v{C1R+1}, 0
    v_mov_b32 v{C1R+2}, {hx(1e-6)}
    v_mov_b32 v{C1R+3}, 0""")
    for r in range(4): e(f"v_mov_b32 v{LFT+r}, 0")
    for r in range(20): e(f"v_mov_b32 v{ACC+r}, 0")
    g.ws_srd(44, P_WS, "HC"); g.ws_srd(48, P_WS, "MEANH"); g.ws_srd(52, P_WS, "SSH")
    e("s_waitcnt vmcnt(0)\ns_barrier")
    stamp(m, "B:loaded")
    def wread(i):
        for nt in range(5):
            a = AF + nt*4
            e(f"ds_read_b64_tr_b16 v[{a}:{a+1}], v{VTR} offset:{i*32*W_PITCH + nt*32}")
            e(f"ds_read_b64_tr_b16 v[{a+2}:{a+3}], v{VTR} offset:{i*32*W_PITCH + nt*32 + 8*W_PITCH}")
    def wmfma(bf):
        for nt in range(5):
            a = AF + nt*4; c = ACC + nt*4
            e(f"v_mfma_f32_16x16x32_bf16 v[{c}:{c+3}], v[{a}:{a+3}], v[{bf}:{bf+3}], v[{c}:{c+3}]")
    def head(hl, dd, slot):
        off = hl * 1920
        e(f"ds_read_b128 v[{KT}:{KT+3}], v{VK0} offset:{off}")
        e(f"ds_read_b128 v[{KT+4}:{KT+7}], v{VK0} offset:{off+16}")
        e(f"ds_read_b128 v[{KT+8}:{KT+11}], v{VK1 + (hl & 3)} offset:{off}")
        e(f"ds_read_b128 v[{KT+12}:{KT+15}], v{VK1 + (hl & 3)} offset:{off+16}")
        e("s_waitcnt lgkmcnt(0)")
        for k in range(4): e(f"v_cvt_pk_bf16_f32 v{A0+k}, v{KT+2*k}, v{KT+2*k+1}")
        for k in range(4): e(f"v_cvt_pk_bf16_f32 v{A1+k}, v{KT+8+2*k}, v{KT+8+2*k+1}")
        e("s_nop 1")
        p = PQF + 4*hl
        e(f"v_mfma_f32_16x16x32_bf16 v[{dd}:{dd+3}], v[{A0}:{A0+3}], v[{p}:{p+3}], 0")
        e(f"v_mfma_f32_16x16x32_bf16 v[{dd+4}:{dd+7}], v[{A1}:{A1+3}], v[{p}:{p+3}], v[{C1R}:{C1R+3}]")
    def post(hl, dd, slot):
        e(f"v_rcp_f32 v{dd+6}, v{dd+6}")
        e("s_nop 0")
        for r in range(4): e(f"v_mul_f32 v{dd+r}, v{dd+r}, v{dd+6}")
        e(f"v_mul_f32 v{dd+4}, v{dd+4}, v{dd+6}")
        e(f"v_mul_f32 v{dd+5}, v{dd+5}, v{dd+6}")
        e(f"v_cvt_pk_bf16_f32 v{BFR+2*slot}, v{dd}, v{dd+1}")
        e(f"v_cvt_pk_bf16_f32 v{BFR+2*slot+1}, v{dd+2}, v{dd+3}")
        e(f"v_cvt_pk_bf16_f32 v{dd+4}, v{dd+4}, v{dd+5}")
        e(f"v_or_b32 v{LFT + (hl >> 2)}, v{LFT + (hl >> 2)}, v{dd+4}")
    def pair(i):
        head(2*i, D0, 0)
        head(2*i + 1, D0 + 8, 1)
        wread(i)
        e("s_nop 4")
        post(2*i, D0, 0)
        post(2*i + 1, D0 + 8, 1)
        e("s_waitcnt lgkmcnt(0)")
        wmfma(BFR)
    for i in range(5): pair(i)
    e(f"s_cmp_lg_u32 s25, 0\ns_cbranch_scc1 {name}_l5")
    pair(5)
    wread(6)
    e(f"s_branch {name}_lj")
    g.lab(f"{name}_l5")
    wread(5)
    g.lab(f"{name}_lj")
    e("s_waitcnt lgkmcnt(0)")
    wmfma(LFT)
    e("s_barrier")
    stamp(m, "B:gemm")
    red_write(g, ACC, 5)
    e("s_waitcnt lgkmcnt(0)\ns_barrier")
    stamp(m, "B:red")
    red_addr(g, 5)
    mean_extra_read(g, ACC, 110)
    red_read(g, AF, 5, 0)
    red_read(g, 56, 5, 1024)
    swap_pair(g, XR)
    unpack4(g, XR, 72); unpack4(g, XR + 2, 76)
    e("s_waitcnt lgkmcnt(6)")
    mean_extra_sum(g, ACC)
    e(f"v_add_f32 v{ACC}, v{ACC}, v{MX}            ; mean_h")
    e("s_waitcnt lgkmcnt(0)")
    sum3(g, AF); sum3(g, 56)
    e(f"v_mov_b32 v{ACC+6}, 0")
    for (a, x) in ((AF, 72), (56, 76)):
        for r in range(4): e(f"v_add_f32 v{a+r}, v{a+r}, v{x+r}")
        for r in range(4): e(f"v_sub_f32 v{a+r}, v{a+r}, v{ACC}")
    e(f"""s_cmp_eq_u32 s25, 2
    s_cbranch_scc1 {name}_q2""")
    for a in (AF, 56):
        for r in range(4): e(f"v_fmac_f32 v{ACC+6}, v{a+r}, v{a+r}")
    e(f"s_branch {name}_q3")
    g.lab(f"{name}_q2")
    e("s_mov_b64 exec, 0xffffffff")
    for r in range(4): e(f"v_fmac_f32 v{ACC+6}, v{AF+r}, v{AF+r}")
    e("s_mov_b64 exec, -1")
    g.lab(f"{name}_q3")
    e(f"""v_cvt_pk_bf16_f32 v80, v{AF}, v{AF+1}
    v_cvt_pk_bf16_f32 v81, v{AF+2}, v{AF+3}
    v_cvt_pk_bf16_f32 v82, v56, v57
    v_cvt_pk_bf16_f32 v83, v58, v59""")
    swap_pair(g, 80)
    tile_soff(g, 36)
    own_mask(g, name)
    e("buffer_store_dwordx4 v[80:83], v7, s[44:47], s36 offen sc1")
    e("s_mov_b64 exec, -1")
    ss_store(g, ACC + 6, 52, 110)
    L = name + "_nm"
    e(f"""s_or_b32 s33, s21, s25
    s_cmp_lg_u32 s33, 0
    s_cbranch_scc1 {L}
    v_add_u32 v110, s30, v3
    v_lshlrev_b32 v110, 2, v110
    s_mov_b64 exec, 0xffff
    buffer_store_dword v{ACC}, v110, s[48:51], 0 offen sc1
    s_mov_b64 exec, -1""")
    g.lab(L)
    n = 0
    if prefetch_next:
        img_dma(g, "IMG1", IMG_SZ); n = 8
    finish_signal(m, CNT_B, n)
    stamp(m, "B:sig")

def phase_c(m, first=False, prefetch_next=True):
    g = m.g; e = g.e; name = m.lab("C")
    XF, AF, ACC, SS, K = 8, 32, 72, 92, 100
    lanes(g); mid_ids(g)
    if first: img_dma(g, "IMG1", IMG_SZ)
    else:
        e(f"s_add_u32 s33, s20, {CNT_B}")
        wait_cnt(m, 33, 1, 8)
        lanes(g)
    stamp(m, "C:go")
    e(f"""s_mul_i32 s27, s26, 18
    s_mul_i32 s28, s25, 6
    s_add_u32 s27, s27, s28
    s_lshl_b32 s27, s27, 10""")
    g.ws_srd(8, P_WS, "HC")
    for i in range(6):
        if i == 4: e("s_add_u32 s27, s27, 4096")
        e(f"buffer_load_dwordx4 v[{XF+4*i}:{XF+4*i+3}], v2, s[8:11], s27 offen offset:{(i%4)*1024} sc1")
    g.ws_srd(16, P_WS, "SSH")
    ss_load(g, SS, 16, 30, 5)
    g.ws_srd(44, P_WS, "HH")
    tr_base(g, 5, 6, 28)
    e("s_waitcnt vmcnt(0)")
    e("s_barrier")
    stamp(m, "C:loaded")
    gemm_stage(g, XF, AF, ACC, 5)
    ss_reduce(g, SS, 6)
    e(f"""v_mov_b32 v{SS+1}, {hx(1e-5)}
    v_fmac_f32 v{SS+1}, {hx(1.0/576)}, v{SS}
    v_rsq_f32 v{SS+2}, v{SS+1}
    v_mul_f32 v{SS+3}, {hx(1.0/576)}, v{SS}
    v_mul_f32 v{SS+3}, v{SS+3}, v{SS+2}
    v_mul_f32 v{SS+3}, v{SS+3}, v{SS+2}
    v_add_f32 v{SS+3}, {hx(1e-5)}, v{SS+3}
    v_mul_f32 v{SS+4}, v{SS+1}, v{SS+3}
    v_rsq_f32 v{SS+5}, v{SS+4}
    s_nop 0
    v_mul_f32 v{K+2}, v{SS+4}, v{SS+5}
    v_mul_f32 v{K}, {hx(-C1)}, v{SS+5}
    v_mul_f32 v{SS+6}, v{SS+5}, v{SS+5}
    v_mul_f32 v{SS+6}, v{SS+6}, v{SS+5}
    v_mul_f32 v{K+1}, {hx(-C2)}, v{SS+6}""")
    red_write(g, ACC, 5)
    e("s_waitcnt lgkmcnt(0)\ns_barrier")
    stamp(m, "C:red")
    red_addr(g, 5)
    red_read(g, AF, 5, 0)
    red_read(g, AF + 12, 5, 1024)
    unit_off(g, 7, 6)
    tile_soff(g, 36)
    e("s_waitcnt lgkmcnt(3)")
    sum3(g, AF)
    gelu4(g, AF, 104, K)
    e("s_waitcnt lgkmcnt(0)")
    sum3(g, AF + 12)
    gelu4(g, AF + 12, 108, K)
    e("v_mov_b32 v106, v108\nv_mov_b32 v107, v109")
    swap_pair(g, 104)
    own_mask(g, name)
    e("buffer_store_dwordx4 v[104:107], v7, s[44:47], s36 offen sc1")
    e("s_mov_b64 exec, -1")
    n = 0
    if prefetch_next:
        img_dma(g, "IMG2", IMG_SZ); n = 8
    finish_signal(m, CNT_C, n)
    stamp(m, "C:sig")

def phase_d(m, check_wp=False):
    g = m.g; e = g.e; name = m.lab("D")
    XF, AF, ACC, SS, HCR, MH = 8, 32, 72, 92, 100, 104
    lanes(g); mid_ids(g)
    g.ws_srd(16, P_WS, "SSH")
    ss_load(g, SS, 16, 30, 110)
    unit_off(g, 7, 110)
    tile_soff(g, 36)
    g.ws_srd(16, P_WS, "HC")
    e(f"buffer_load_dwordx4 v[{HCR}:{HCR+3}], v7, s[16:19], s36 offen sc1")
    g.ws_srd(16, P_WS, "MEANH")
    e(f"""v_add_u32 v110, s30, v3
    v_lshlrev_b32 v110, 2, v110
    buffer_load_dword v{MH}, v110, s[16:19], 0 offen sc1""")
    e(f"""s_mov_b32 s31, -1
    s_mov_b32 s32, 1
    s_cmp_eq_u32 s25, 1
    s_cselect_b32 s31, 1, s31
    s_cselect_b32 s32, -2, s32
    s_cmp_eq_u32 s25, 2
    s_cselect_b32 s31, -2, s31
    s_cselect_b32 s32, 2, s32""")
    for (v, sd) in ((111, 31), (112, 32)):
        e(f"""v_add_u32 v113, s30, v3
        v_add_u32 v113, s{sd}, v113
        v_lshrrev_b32 v{v}, 4, v113
        v_mul_u32_u24 v{v}, 18432, v{v}
        v_and_b32 v114, 15, v113
        v_lshl_add_u32 v{v}, v114, 4, v{v}
        v_lshl_add_u32 v{v}, v4, 8, v{v}
        v_cmp_gt_u32 vcc, {S}, v113
        v_mov_b32 v114, 0x7fff0000
        s_nop 0
        v_cndmask_b32 v{v}, v114, v{v}, vcc""")
    e("""v_cmp_gt_u32 vcc, 2, v4
    s_nop 1
    v_cndmask_b32 v113, v112, v111, vcc""")
    e(f"s_add_u32 s33, s20, {CNT_C - 1}")
    e("s_waitcnt vmcnt(0)")
    if check_wp:
        R = MAPR; J = 32 // R; lr = R.bit_length() - 1; lj = J.bit_length() - 1; njg = 8 // J
        e(f"""s_and_b32 s34, s2, {njg-1}
        s_lshl_b32 s34, s34, {lj}
        s_lshr_b32 s35, s2, {3+lr}
        s_add_u32 s34, s34, s35
        s_add_u32 s34, s34, 144""")
        wait_cnt(m, 33, 3, 8, lo=CNT_C, hi=CNT_C + 31, extra=34)
    else:
        wait_cnt(m, 33, 3, 8, lo=CNT_C, hi=CNT_C + 31)
    lanes(g)
    stamp(m, "D:go")
    g.ws_srd(8, P_WS, "HH")
    e("s_mul_i32 s27, s25, 6144\ns_add_u32 s28, s27, 4096")
    def xl(i, v):
        so = "s27" if i < 4 else "s28"
        e(f"buffer_load_dwordx4 v[{XF+4*i}:{XF+4*i+3}], v{v}, s[8:11], {so} offen offset:{(i%4)*1024} sc1")
    e(f"s_cmp_eq_u32 s25, 1\ns_cbranch_scc1 {name}_x1\ns_cmp_eq_u32 s25, 2\ns_cbranch_scc1 {name}_x2")
    for i, v in enumerate((111, 111, 111, 111, 113, 112)): xl(i, v)
    e(f"s_branch {name}_xd")
    g.lab(f"{name}_x1")
    for i, v in enumerate((111, 111, 111, 112, 112, 112)): xl(i, v)
    e(f"s_branch {name}_xd")
    g.lab(f"{name}_x2")
    for i, v in enumerate((111, 113, 112, 112, 112, 112)): xl(i, v)
    g.lab(f"{name}_xd")
    g.ws_srd(44, P_WS, "X1C"); g.ws_srd(48, P_WS, "BASE"); g.ws_srd(52, P_WS, "SS1")
    e("s_mul_i32 s28, s25, 6")
    tr_base(g, 5, 110, 28)
    ss_reduce(g, SS, 110)
    e(f"""v_mov_b32 v{SS+1}, {hx(1e-5)}
    v_fmac_f32 v{SS+1}, {hx(1.0/576)}, v{SS}
    v_rsq_f32 v{SS+2}, v{SS+1}""")
    swap_pair(g, HCR)
    unpack4(g, HCR, 112); unpack4(g, HCR + 2, 116)
    e("s_waitcnt vmcnt(0)")
    stamp(m, "D:loaded")
    gemm_stage(g, XF, AF, ACC, 5)
    red_write(g, ACC, 5)
    e("s_waitcnt lgkmcnt(0)\ns_barrier")
    stamp(m, "D:red")
    red_addr(g, 5)
    mean_extra_read(g, ACC, 110)
    red_read(g, AF, 5, 0)
    red_read(g, AF + 12, 5, 1024)
    e("s_waitcnt lgkmcnt(6)")
    m1 = ACC
    mean_extra_sum(g, m1)
    e(f"v_mov_b32 v{m1+6}, 0")
    e("s_waitcnt lgkmcnt(0)")
    for (a, h) in ((AF, 112), (AF + 12, 116)):
        sum3(g, a)
        for r in range(4): e(f"v_fmac_f32 v{a+r}, v{h+r}, v{SS+2}")
        for r in range(4): e(f"v_add_f32 v{h+r}, v{h+r}, v{MH}")
        for r in range(4): e(f"v_add_f32 v{h+r}, v{h+r}, v{a+r}")
        for r in range(4): e(f"v_sub_f32 v{a+r}, v{a+r}, v{m1}")
    e(f"s_cmp_eq_u32 s25, 2\ns_cbranch_scc1 {name}_q2")
    for a in (AF, AF + 12):
        for r in range(4): e(f"v_fmac_f32 v{m1+6}, v{a+r}, v{a+r}")
    e(f"s_branch {name}_q3")
    g.lab(f"{name}_q2")
    e("s_mov_b64 exec, 0xffffffff")
    for r in range(4): e(f"v_fmac_f32 v{m1+6}, v{AF+r}, v{AF+r}")
    e("s_mov_b64 exec, -1")
    g.lab(f"{name}_q3")
    e(f"""v_cvt_pk_bf16_f32 v80, v{AF}, v{AF+1}
    v_cvt_pk_bf16_f32 v81, v{AF+2}, v{AF+3}
    v_cvt_pk_bf16_f32 v82, v{AF+12}, v{AF+13}
    v_cvt_pk_bf16_f32 v83, v{AF+14}, v{AF+15}
    v_cvt_pk_bf16_f32 v84, v112, v113
    v_cvt_pk_bf16_f32 v85, v114, v115
    v_cvt_pk_bf16_f32 v86, v116, v117
    v_cvt_pk_bf16_f32 v87, v118, v119""")
    swap_pair(g, 80); swap_pair(g, 84)
    own_mask(g, name)
    e("buffer_store_dwordx4 v[80:83], v7, s[44:47], s36 offen sc1")
    e("buffer_store_dwordx4 v[84:87], v7, s[48:51], s36 offen sc1")
    e("s_mov_b64 exec, -1")
    ss_store(g, m1 + 6, 52, 110)
    finish_signal(m, CNT_D, 0)
    stamp(m, "D:sig")

LDS_X, LDS_H, LDS_FLAG = 0, 73728, 147456
RINGK = 3
def phase_ef(m):
    g = m.g; e = g.e; name = m.lab("E")
    NR = RINGK * 3
    ACC, BF, CONST, RING = 36, 20, 8, 84
    lanes(g); efmap(g)
    e(f"""s_mul_i32 s31, s21, 12
    s_add_u32 s31, s31, s{S_W}
    s_mul_i32 s31, s31, {WP_WAVE}""")
    g.ws_srd(12, P_WS, "WP")
    for sl in range(RINGK):
        for i in range(3):
            r = RING + (sl*3+i)*4
            e(f"buffer_load_dwordx4 v[{r}:{r+3}], v2, s[12:15], s31 offen offset:{i*1024}")
        e("s_add_u32 s31, s31, 3072")
    e(f"""s_cmp_lg_u32 s{S_W}, 4
    s_cbranch_scc1 {name}_noz
    v_lshlrev_b32 v5, 2, v1
    v_add_u32 v5, {LDS_FLAG + 1024}, v5
    v_mov_b32 v6, 0
    ds_write_b32 v5, v6""")
    g.lab(f"{name}_noz")
    e(f"s_add_u32 s33, s20, {CNT_D}")
    wait_cnt(m, 33, 1, 8)
    lanes(g)
    stamp(m, "E:go")
    e(f"""s_mul_i32 s28, s20, 73728
    s_mul_i32 s29, s{S_W}, 6144
    s_add_u32 s28, s28, s29
    s_mov_b32 m0, s29""")
    g.ws_srd(8, P_WS, "X1C")
    for i in range(6):
        if i == 4:
            e("s_add_u32 m0, s29, 4096\ns_add_u32 s28, s28, 4096\ns_nop 0")
        e(f"buffer_load_dwordx4 v2, s[8:11], s28 offen offset:{(i%4)*1024} sc1 lds")
    g.ws_srd(16, P_WS, "SS1")
    e(f"""s_cmp_ge_u32 s{S_W}, 4
    s_cbranch_scc1 {name}_noss
    s_lshl_b32 s30, s20, 6
    s_lshl_b32 s33, s{S_W}, 4
    s_add_u32 s30, s30, s33""")
    ss_load(g, ACC, 16, 30, 5)
    e("s_waitcnt vmcnt(0)")
    ss_reduce(g, ACC, ACC + 8)
    a = ACC; c = CONST
    e(f"""v_mov_b32 v{a+1}, {hx(1e-5)}
    v_fmac_f32 v{a+1}, {hx(1.0/576)}, v{a}
    v_rsq_f32 v{a+2}, v{a+1}
    s_nop 0
    v_mul_f32 v{c+2}, v{a+1}, v{a+2}
    v_mul_f32 v{c}, {hx(-C1)}, v{a+2}
    v_mul_f32 v{a+3}, v{a+2}, v{a+2}
    v_mul_f32 v{a+3}, v{a+3}, v{a+2}
    v_mul_f32 v{c+1}, {hx(-C2)}, v{a+3}
    s_lshl_b32 s33, s{S_W}, 8
    v_lshlrev_b32 v5, 4, v3
    v_add_u32 v5, s33, v5
    v_add_u32 v5, {LDS_FLAG}, v5
    ds_write_b96 v5, v[{CONST}:{CONST+2}]""")
    g.lab(f"{name}_noss")
    g.ws_srd(24, P_WS, "PART")
    e(f"""s_mul_i32 s32, s{S_W}, 3
    s_waitcnt vmcnt(0) lgkmcnt(0)
    s_barrier""")
    stamp(m, "E:loaded")
    e(f"v_lshlrev_b32 v5, 4, v3\nv_add_u32 v5, {LDS_FLAG}, v5")
    for st in range(4):
        e(f"ds_read_b96 v[{BF+4*st}:{BF+4*st+2}], v5 offset:{st*256}")
    for i in range(48): e(f"v_mov_b32 v{ACC+i}, 0")
    e("s_waitcnt lgkmcnt(0)")
    for st in range(4):
        for k in range(3): e(f"v_mov_b32 v{CONST+3*st+k}, v{BF+4*st+k}")
    e("s_mov_b32 s34, 0\ns_mov_b32 s35, 0\nv_mov_b32 v7, v2\ns_setprio 3")
    def body(last):
        for st in range(4):
            e(f"ds_read_b128 v[{BF+4*st}:{BF+4*st+3}], v7 offset:{st*18432}")
        for kk in range(6):
            sl = kk % RINGK
            e(f"s_waitcnt vmcnt({NR-3 if not last else min(NR-3, 3*(5-kk))})")
            for st in range(4):
                b = BF + 4*st
                e("s_waitcnt lgkmcnt(3)" if kk < 5 else f"s_waitcnt lgkmcnt({3-st})")
                for i in range(3):
                    a_ = RING + (sl*3+i)*4
                    c_ = ACC + (i*4+st)*4
                    e(f"v_mfma_f32_16x16x32_bf16 v[{c_}:{c_+3}], v[{a_}:{a_+3}], v[{b}:{b+3}], v[{c_}:{c_+3}]")
                if kk < 5:
                    e(f"ds_read_b128 v[{b}:{b+3}], v7 offset:{st*18432 + (kk+1)*1024}")
            if not (last and kk >= 6 - RINGK):
                for i in range(3):
                    r = RING + (sl*3+i)*4
                    e(f"buffer_load_dwordx4 v[{r}:{r+3}], v2, s[12:15], s31 offen offset:{i*1024}")
                e("s_add_u32 s31, s31, 3072")
    g.lab(f"{name}_loop")
    body(False)
    e(f"""v_add_u32 v7, 6144, v7
    s_add_u32 s35, s35, 1
    s_cmp_eq_u32 s34, 0
    s_cbranch_scc0 {name}_p1next
    s_cmp_lt_u32 s35, 3
    s_cbranch_scc1 {name}_loop
    s_setprio 2
    s_nop 7""")
    stamp(m, "E:g1")
    e(f"""v_lshrrev_b32 v4, 5, v1
    s_mul_i32 s36, s{S_W}, 6
    v_add_u32 v4, s36, v4
    v_lshlrev_b32 v4, 8, v4
    v_lshl_add_u32 v4, v3, 4, v4
    v_bfe_u32 v5, v1, 4, 1
    v_lshl_add_u32 v4, v5, 3, v4
    v_add_u32 v4, {LDS_H}, v4""")
    for i in range(3):
        for st in range(4):
            c_ = ACC + (i*4+st)*4; k = CONST + 3*st
            t = BF + ((i*4+st) % 4) * 4
            gelu4(g, c_, t, k)
            e(f"ds_write_b64 v4, v[{t}:{t+1}] offset:{st*18432 + i*512}")
    for i in range(48): e(f"v_mov_b32 v{ACC+i}, 0")
    e(f"""s_waitcnt lgkmcnt(0)
    s_lshr_b32 s36, s{S_W}, 2
    s_lshl_b32 s36, s36, 2
    s_add_u32 s36, s36, {LDS_FLAG + 1024}
    v_mov_b32 v4, s36
    v_mov_b32 v5, 1
    s_mov_b64 exec, 1
    ds_add_u32 v4, v5
    s_mov_b64 exec, -1
    s_setprio 0
    s_mov_b32 s34, 1
    s_mov_b32 s35, 0
    v_add_u32 v7, {LDS_H}, v2""")
    stamp(m, "E:gelu")
    g.lab(f"{name}_p1next")
    L = f"{name}_wf"
    e(f"""s_lshl_b32 s36, s35, 2
    s_add_u32 s36, s36, {LDS_FLAG + 1024}
    v_mov_b32 v4, s36""")
    g.lab(L)
    e(f"""ds_read_b32 v5, v4
    s_waitcnt lgkmcnt(0)
    v_readfirstlane_b32 s36, v5
    s_cmp_ge_u32 s36, 4
    s_cbranch_scc1 {L}_ok
    s_sleep 1
    s_branch {L}""")
    g.lab(L + "_ok")
    e(f"s_cmp_lt_u32 s35, 2\ns_cbranch_scc1 {name}_loop")
    body(True)
    e("s_nop 7")
    stamp(m, "E:g2")
    e(f"""s_lshl_b32 s36, s21, 5
    s_add_u32 s36, s36, s20
    s_mul_i32 s36, s36, 72
    s_mul_i32 s33, s{S_W}, 6
    s_add_u32 s36, s36, s33
    s_lshl_b32 s36, s36, 10""")
    for i in range(3):
        for stp in range(2):
            c0 = ACC + (i*4+2*stp)*4; c1 = c0 + 4
            e(f"v_cvt_pk_bf16_f32 v{c0}, v{c0}, v{c0+1}")
            e(f"v_cvt_pk_bf16_f32 v{c0+1}, v{c0+2}, v{c0+3}")
            e(f"v_cvt_pk_bf16_f32 v{c0+2}, v{c1}, v{c1+1}")
            e(f"v_cvt_pk_bf16_f32 v{c0+3}, v{c1+2}, v{c1+3}")
            k = i*2 + stp
            if k == 4: e("s_add_u32 s36, s36, 4096")
            e(f"buffer_store_dwordx4 v[{c0}:{c0+3}], v2, s[24:27], s36 offen offset:{(k%4)*1024} sc1")
    e(f"s_add_u32 s33, s20, {CNT_E}")
    signal(m, 33)
    stamp(m, "E:sig")

def phase_g(m):
    g = m.g; e = g.e; name = m.lab("G")
    lanes(g); efmap(g)
    e(f"""s_mul_i32 s24, s21, 9
    s_add_u32 s24, s24, s{S_W}
    s_lshr_b32 s25, s24, 1               ; t
    s_and_b32 s26, s24, 1                ; stp
    s_lshl_b32 s27, s20, 2
    s_lshl_b32 s28, s26, 1
    s_add_u32 s27, s27, s28
    s_mul_i32 s28, s27, 72
    s_lshl_b32 s29, s25, 1
    s_add_u32 s28, s28, s29
    s_lshl_b32 s28, s28, 8
    v_lshrrev_b32 v5, 5, v1
    v_lshlrev_b32 v5, 8, v5
    v_lshl_add_u32 v5, v3, 4, v5
    v_bfe_u32 v6, v1, 4, 1
    v_lshl_add_u32 v5, v6, 3, v5""")
    g.ws_srd(12, P_WS, "BASE")
    e(f"""s_cmp_ge_u32 s{S_W}, 9
    s_cbranch_scc1 {name}_w
    buffer_load_dwordx2 v[8:9], v5, s[12:15], s28 offen sc1
    s_add_u32 s28, s28, 18432
    buffer_load_dwordx2 v[10:11], v5, s[12:15], s28 offen sc1""")
    g.lab(f"{name}_w")
    e(f"s_add_u32 s33, s20, {CNT_E}")
    e("s_waitcnt vmcnt(0)")
    wait_cnt(m, 33, 1, 8)
    lanes(g)
    stamp(m, "G:go")
    e(f"s_cmp_ge_u32 s{S_W}, 9\ns_cbranch_scc1 {name}_end")
    g.ws_srd(8, P_WS, "PART"); g.srd_from(16, PTR["out"], 0, FMSZ)
    e(f"""s_mul_i32 s30, s20, 72
    s_add_u32 s30, s30, s24
    s_lshl_b32 s30, s30, 10""")
    for j in range(8):
        e(f"buffer_load_dwordx4 v[{12+4*j}:{15+4*j}], v2, s[8:11], s30 offen sc1")
        if j < 7: e(f"s_add_u32 s30, s30, {32*72*1024}")
    e("""s_lshl_b32 s27, s27, 4
    v_add_u32 v6, s27, v3
    v_mul_u32_u24 v6, 1152, v6
    s_lshl_b32 s25, s25, 5
    v_lshl_add_u32 v6, v4, 3, v6
    v_add_u32 v6, s25, v6
    v_add_u32 v7, 18432, v6""")
    for d in range(4):
        e(f"v_lshlrev_b32 v{48+2*d}, 16, v{8+d}")
        e(f"v_and_b32 v{49+2*d}, 0xffff0000, v{8+d}")
    for j in range(8):
        e(f"s_waitcnt vmcnt({7-j})")
        for d in range(4):
            r = 12 + 4*j + d
            e(f"v_lshlrev_b32 v56, 16, v{r}")
            e(f"v_and_b32 v57, 0xffff0000, v{r}")
            e(f"v_add_f32 v{48+2*d}, v{48+2*d}, v56")
            e(f"v_add_f32 v{49+2*d}, v{49+2*d}, v57")
    for d in range(4): e(f"v_cvt_pk_bf16_f32 v{8+d}, v{48+2*d}, v{49+2*d}")
    e("buffer_store_dwordx2 v[8:9], v6, s[16:19], 0 offen")
    e("buffer_store_dwordx2 v[10:11], v7, s[16:19], 0 offen")
    g.lab(f"{name}_end")
    stamp(m, "G:end")
```

```python
from gl import *
import mega2 as mega
from mega2 import *
from scaff2 import krow_code

UNIT = 16384 + 2*9216
A_TAB = 4 * UNIT
A_STAT = A_TAB
A_CS = A_TAB + 1024
A_NTAB = A_CS + 1280
A_EX = 0
A_STG = 73728
CNT_A = CNT_G
CNT_WP = 144

def swap23(g, vin, vout, t):
    g.e(f"""v_and_b32 v{vout}, 0x13, v{vin}
    v_and_b32 v{t}, 4, v{vin}
    v_lshl_or_b32 v{vout}, v{t}, 1, v{vout}
    v_and_b32 v{t}, 8, v{vin}
    v_lshrrev_b32 v{t}, 1, v{t}
    v_or_b32 v{vout}, v{vout}, v{t}""")

def trbase288(g, v, t):
    g.e(f"""v_lshrrev_b32 v{v}, 5, v1
    v_lshlrev_b32 v{v}, 4, v{v}
    v_bfe_u32 v{t}, v1, 4, 1
    v_lshl_add_u32 v{v}, v{t}, 2, v{v}
    v_bfe_u32 v{t}, v1, 2, 2
    v_add_u32 v{v}, v{v}, v{t}
    v_mul_u32_u24 v{v}, 288, v{v}
    v_and_b32 v{t}, 3, v1
    v_lshl_add_u32 v{v}, v{t}, 3, v{v}""")

def xfrag_base(g, v, t):
    g.e(f"""v_bfe_u32 v{t}, v3, 1, 3
    v_xor_b32 v{v}, v4, v{t}
    v_lshlrev_b32 v{v}, 4, v{v}
    v_lshl_add_u32 v{v}, v3, 7, v{v}
    v_or_b32 v{v+1}, 4, v4
    v_xor_b32 v{v+1}, v{v+1}, v{t}
    v_lshlrev_b32 v{v+1}, 4, v{v+1}
    v_lshl_add_u32 v{v+1}, v3, 7, v{v+1}""")

def phase_a_gemm(m):
    g = m.g; e = g.e; name = m.lab("A")
    lanes(g)
    e("""s_and_b32 s23, s2, 7
    s_lshr_b32 s24, s2, 3
    s_lshr_b32 s20, s23, 1
    s_lshl_b32 s20, s20, 2
    s_and_b32 s25, s24, 3
    s_add_u32 s20, s20, s25              ; rb128
    s_and_b32 s21, s23, 1
    s_mul_i32 s21, s21, 6
    s_lshr_b32 s25, s24, 2
    s_add_u32 s21, s21, s25              ; cg""")
    e(f"s_cmp_ge_u32 s{S_W}, 8\ns_cbranch_scc1 {name}_load")
    ACC, WF, XF = 8, 80, 116
    VX, VW = 124, 126
    e(f"""s_and_b32 s24, s{S_W}, 3          ; sp
    s_lshr_b32 s25, s{S_W}, 2              ; kh""")
    xfrag_base(g, VX, 5)
    e(f"""s_cmp_eq_u32 s25, 1
    s_cselect_b64 vcc, -1, 0
    s_lshl_b32 s26, s24, 12
    v_cndmask_b32 v{VX}, v{VX}, v{VX+1}, vcc
    v_add_u32 v{VX}, s26, v{VX}""")
    trbase288(g, VW, 5)
    e(f"""s_mul_i32 s26, s25, 9216
    s_add_u32 s26, s26, 16384
    v_add_u32 v{VW}, s26, v{VW}""")
    for i in range(72): e(f"v_mov_b32 v{ACC+i}, 0")
    e(f"s_mov_b32 s27, 0\ns_cmp_ge_u32 s21, 4\ns_cbranch_scc1 {name}_kvloop")
    def cloop(tag, kv):
        g.lab(f"{name}_{tag}")
        e(f"""s_and_b32 s28, s27, 3
        s_mul_i32 s28, s28, {UNIT}
        v_add_u32 v5, s28, v{VX}
        v_add_u32 v6, s28, v{VW}
        s_barrier
        ds_read_b128 v[{XF}:{XF+3}], v5
        ds_read_b128 v[{XF+4}:{XF+7}], v5 offset:2048""")
        for t in range(9):
            a = WF + 4*t
            e(f"ds_read_b64_tr_b16 v[{a}:{a+1}], v6 offset:{t*32}")
            e(f"ds_read_b64_tr_b16 v[{a+2}:{a+3}], v6 offset:{t*32 + 8*288}")
        for t in range(9):
            e(f"s_waitcnt lgkmcnt({min(15, 16 - 2*t)})")
            a = WF + 4*t
            for si in range(2):
                c = ACC + (si*9 + t)*4; x = XF + 4*si
                if kv: e(f"v_mfma_f32_16x16x32_bf16 v[{c}:{c+3}], v[{x}:{x+3}], v[{a}:{a+3}], v[{c}:{c+3}]")
                else: e(f"v_mfma_f32_16x16x32_bf16 v[{c}:{c+3}], v[{a}:{a+3}], v[{x}:{x+3}], v[{c}:{c+3}]")
        e(f"s_add_u32 s27, s27, 1\ns_cmp_lt_u32 s27, 9\ns_cbranch_scc1 {name}_{tag}")
    cloop("qloop", False)
    e(f"s_branch {name}_cdone")
    cloop("kvloop", True)
    g.lab(f"{name}_cdone")
    e("s_barrier")
    stamp(m, "A:gemm")
    e(f"""s_mul_i32 s28, s{S_W}, 9216
    v_add_u32 v5, s28, v2
    s_cmp_eq_u32 s25, 0
    s_cbranch_scc1 {name}_s1""")
    for t in range(9): e(f"ds_write_b128 v5, v[{ACC+4*t}:{ACC+4*t+3}] offset:{t*1024}")
    for i in range(36): e(f"v_mov_b32 v{ACC+i}, v{ACC+36+i}")
    e(f"s_branch {name}_s2")
    g.lab(f"{name}_s1")
    for t in range(9): e(f"ds_write_b128 v5, v[{ACC+36+4*t}:{ACC+36+4*t+3}] offset:{t*1024}")
    g.lab(f"{name}_s2")
    e("s_waitcnt lgkmcnt(0)\ns_barrier")
    e(f"""s_xor_b32 s28, s{S_W}, 4
    s_mul_i32 s28, s28, 9216
    v_add_u32 v5, s28, v2""")
    for t in range(9): e(f"ds_read_b128 v[{ACC+36+4*t}:{ACC+36+4*t+3}], v5 offset:{t*1024}")
    e(f"""s_lshl_b32 s26, s24, 1
    s_add_u32 s26, s26, s25
    s_cmp_ge_u32 s21, 4
    s_cbranch_scc1 {name}_kvepi""")
    ST, CS, AD = 80, 84, 128
    e(f"""s_lshl_b32 s28, s26, 7
    s_add_u32 s28, s28, {A_TAB}
    v_lshl_add_u32 v5, v3, 3, s28
    ds_read_b64 v[{ST}:{ST+1}], v5 offset:{A_STAT - A_TAB}
    v_lshlrev_b32 v6, 4, v4
    v_add_u32 v6, {A_TAB}, v6""")
    for t in range(9):
        e(f"ds_read_b128 v[{CS+4*t}:{CS+4*t+3}], v6 offset:{A_CS - A_TAB + t*64}")
    e("s_waitcnt lgkmcnt(0)")
    for i in range(36): e(f"v_add_f32 v{ACC+i}, v{ACC+i}, v{ACC+36+i}")
    for t in range(9):
        e(f"ds_read_b128 v[{ACC+36+4*t}:{ACC+36+4*t+3}], v6 offset:{A_CS - A_TAB + 640 + t*64}")
    e(f"""s_mul_i32 s29, s{S_W}, 6144
    s_add_u32 s29, s29, {A_STG}
    v_add_u32 v7, s29, v2
    v_mov_b32 v124, 0
    v_mov_b32 v125, 0
    v_mov_b32 v126, 0
    v_mov_b32 v127, 0""")
    for k in range(6): e(f"ds_write_b128 v7, v[124:127] offset:{k*1024}")
    e(f"v_lshlrev_b32 v6, 3, v4\nv_add_u32 v6, {A_TAB}, v6")
    for t in range(9):
        for pr in range(2):
            e(f"ds_read_b32 v{AD + 2*t + pr}, v6 offset:{A_NTAB - A_TAB + (8*t + pr)*4}")
    e(f"""s_waitcnt lgkmcnt(0)
    v_lshlrev_b32 v5, 4, v3
    v_add_u32 v5, s29, v5""")
    for i in range(36): e(f"v_add_f32 v{CS+i}, v{CS+i}, v{ACC+36+i}")
    e(f"v_sub_f32 v{ST}, 0, v{ST}                 ; -mean")
    for t in range(9):
        c = ACC + 4*t; T1 = ACC + 36; T2 = ACC + 40
        for r in range(4): e(f"v_fmac_f32 v{c+r}, v{ST}, v{CS+4*t+r}")
        for r in range(4): e(f"v_mul_f32 v{c+r}, v{c+r}, v{ST+1}")
        for r in range(4): e(f"v_mul_f32 v{T1+r}, {hx(1.4426950408889634)}, v{c+r}")
        for r in range(4): e(f"v_exp_f32 v{T1+r}, v{T1+r}")
        for r in range(4): e(f"v_add_f32 v{T2+r}, 1.0, v{c+r}")
        for r in range(4):
            e(f"v_cmp_lt_f32 vcc, 0, v{c+r}")
            e("s_nop 1")
            e(f"v_cndmask_b32 v{c+r}, v{T1+r}, v{T2+r}, vcc")
        for r in range(4): e(f"v_add_f32 v{c+r}, {hx(1e-6)}, v{c+r}")
        e(f"v_cvt_pk_bf16_f32 v{c}, v{c}, v{c+1}")
        e(f"v_cvt_pk_bf16_f32 v{c+1}, v{c+2}, v{c+3}")
        e(f"v_add_u32 v{AD+2*t}, v{AD+2*t}, v5")
        e(f"v_add_u32 v{AD+2*t+1}, v{AD+2*t+1}, v5")
        e(f"ds_write_b32 v{AD+2*t}, v{c}")
        e(f"ds_write_b32 v{AD+2*t+1}, v{c+1}")
    e("s_waitcnt lgkmcnt(0)")
    for k in range(6): e(f"ds_read_b128 v[{CS+4*k}:{CS+4*k+3}], v7 offset:{k*1024}")
    g.ws_srd(8, P_WS, "PQP")
    e(f"""s_lshl_b32 s28, s20, 3
    s_add_u32 s28, s28, s26              ; st_g
    s_lshl_b32 s30, s28, 5
    s_lshl_b32 s31, s21, 3
    s_add_u32 s30, s30, s31
    s_mul_i32 s30, s30, 768
    s_waitcnt lgkmcnt(0)""")
    for k in range(6):
        if k == 4: e("s_add_u32 s30, s30, 4096")
        e(f"buffer_store_dwordx4 v[{CS+4*k}:{CS+4*k+3}], v2, s[8:11], s30 offen offset:{(k%4)*1024} sc1")
    e(f"s_cmp_lg_u32 s21, 0\ns_cbranch_scc1 {name}_cend")
    g.ws_srd(8, P_WS, "XST")
    e(f"""s_lshl_b32 s28, s28, 4
    v_add_u32 v5, s28, v3
    v_lshlrev_b32 v5, 2, v5
    v_sub_f32 v{ST}, 0, v{ST}
    s_mov_b64 exec, 0xffff
    buffer_store_dword v{ST}, v5, s[8:11], 0 offen sc1
    s_mov_b64 exec, -1
    s_branch {name}_cend""")
    g.lab(f"{name}_kvepi")
    ST, CS = 80, 88
    e(f"""s_lshl_b32 s28, s26, 7
    s_add_u32 s28, s28, {A_TAB}
    v_lshl_add_u32 v5, v4, 5, s28
    ds_read_b128 v[{ST}:{ST+3}], v5 offset:{A_STAT - A_TAB}
    ds_read_b128 v[{ST+4}:{ST+7}], v5 offset:{A_STAT - A_TAB + 16}
    v_lshlrev_b32 v6, 2, v3
    v_add_u32 v6, {A_TAB}, v6""")
    for t in range(9):
        e(f"ds_read_b32 v{CS+t}, v6 offset:{A_CS - A_TAB + t*64}")
        e(f"ds_read_b32 v{CS+9+t}, v6 offset:{A_CS - A_TAB + 640 + t*64}")
    e("s_waitcnt lgkmcnt(0)")
    for i in range(36): e(f"v_add_f32 v{ACC+i}, v{ACC+i}, v{ACC+36+i}")
    for t in range(9): e(f"v_add_f32 v{CS+t}, v{CS+t}, v{CS+9+t}")
    e("v_cmp_gt_u32 vcc, 8, v3\ns_mov_b64 s[34:35], vcc")
    for t in range(9):
        c = ACC + 4*t; T1 = ACC + 36; T2 = ACC + 40
        e(f"v_sub_f32 v{T1}, 0, v{CS+t}")
        for r in range(4): e(f"v_fmac_f32 v{c+r}, v{T1}, v{ST+2*r}")
        for r in range(4): e(f"v_mul_f32 v{c+r}, v{c+r}, v{ST+2*r+1}")
        if t <= 4:
            for r in range(4): e(f"v_mul_f32 v{T1+r}, {hx(1.4426950408889634)}, v{c+r}")
            for r in range(4): e(f"v_exp_f32 v{T1+r}, v{T1+r}")
            for r in range(4): e(f"v_add_f32 v{T2+r}, 1.0, v{c+r}")
            for r in range(4):
                e(f"v_cmp_lt_f32 vcc, 0, v{c+r}")
                e("s_nop 1")
                e(f"v_cndmask_b32 v{T1+r}, v{T1+r}, v{T2+r}, vcc")
            for r in range(4): e(f"v_add_f32 v{T1+r}, {hx(1e-6)}, v{T1+r}")
            if t < 4:
                for r in range(4): e(f"v_mov_b32 v{c+r}, v{T1+r}")
            else:
                for r in range(4): e(f"v_cndmask_b32 v{c+r}, v{c+r}, v{T1+r}, s[34:35]")
        e(f"v_cvt_pk_bf16_f32 v{c}, v{c}, v{c+1}")
        e(f"v_cvt_pk_bf16_f32 v{c+1}, v{c+2}, v{c+3}")
        e(f"v_mov_b32 v{c+2}, 0\nv_mov_b32 v{c+3}, 0")
    O4 = 96
    e(f"""v_mov_b32 v{O4+2}, 0x3f803f80
    v_cndmask_b32 v{O4}, v{ACC+16}, v{O4+2}, s[34:35]
    v_cndmask_b32 v{O4+1}, v{ACC+17}, v{O4+2}, s[34:35]
    v_mov_b32 v{O4+2}, 0
    v_mov_b32 v{O4+3}, 0
    s_nop 1""")
    def slot(a, b):
        bp = b - 4
        if abs(bp - a) <= 1: return 3*a + (bp - a + 1)
        return {2: 14, 3: 15, 4: 0}[a]
    pairs = [(0,4),(0,5),(1,4),(1,5),(1,6),(2,5),(2,6),(2,7),(3,6),(3,7),(3,8),(4,7),(4,8),(2,4),(3,4),(4,4)]
    assert sorted(slot(a, b) for a, b in pairs) == list(range(16))
    DD = 100
    for i, (a, b) in enumerate(pairs):
        A = O4 if b == 4 else ACC + 4*b
        e(f"v_mfma_f32_16x16x32_bf16 v[{DD+4*i}:{DD+4*i+3}], v[{A}:{A+3}], v[{ACC+4*a}:{ACC+4*a+3}], 0")
    e("s_barrier")
    e(f"""s_lshl_b32 s29, s{S_W}, 14
    v_add_u32 v5, s29, v2
    s_nop 7""")
    for i, (a, b) in enumerate(pairs):
        e(f"ds_write_b128 v5, v[{DD+4*i}:{DD+4*i+3}] offset:{slot(a, b)*1024}")
    e("s_waitcnt lgkmcnt(0)")
    g.lab(f"{name}_cend")
    e(f"s_branch {name}_join")

    g.lab(f"{name}_load")
    e(f"s_sub_u32 s24, s{S_W}, 8\ns_cmp_ge_u32 s24, 2\ns_cbranch_scc1 {name}_wload")
    VO = 8
    g.srd_from(8, PTR["x"], 0, FMSZ)
    e(f"""v_lshrrev_b32 v5, 3, v1
    v_mul_u32_u24 v5, 1152, v5
    v_and_b32 v6, 7, v1
    v_xor_b32 v7, v6, v4
    v_lshl_add_u32 v{VO}, v7, 4, v5
    v_or_b32 v7, 4, v4
    v_xor_b32 v7, v6, v7
    v_lshl_add_u32 v{VO+1}, v7, 4, v5
    s_lshl_b32 s26, s20, 7
    s_lshl_b32 s27, s24, 6
    s_add_u32 s26, s26, s27
    s_mul_i32 s26, s26, 1152
    s_lshl_b32 s27, s24, 13""")
    def xissue(unit_sgpr_slot, unit_sgpr_col):
        for mm in range(8):
            e(f"s_add_u32 m0, s30, {mm*1024}")
            e(f"s_add_u32 s32, s31, {mm*8*1152}")
            e(f"buffer_load_dwordx4 v{VO + (mm & 1)}, s[8:11], s32 offen lds")
    for u in range(3):
        e(f"s_add_u32 s30, s27, {u*UNIT}\ns_add_u32 s31, s26, {u*128}")
        xissue(None, None)
    VX2 = 10
    xfrag_base(g, VX2, 5)
    e(f"v_add_u32 v{VX2}, s27, v{VX2}\nv_add_u32 v{VX2+1}, s27, v{VX2+1}")
    SUM = 16; FR = 32
    for i in range(8): e(f"v_mov_b32 v{SUM+i}, 0")
    e("s_mov_b32 s33, 0x3f803f80\ns_mov_b32 s28, 0")
    g.lab(f"{name}_xl")
    e(f"""s_cmp_le_u32 s28, 6
    s_cbranch_scc1 {name}_xw16
    s_cmp_eq_u32 s28, 7
    s_cbranch_scc1 {name}_xw8
    s_waitcnt vmcnt(0)
    s_branch {name}_xwd""")
    g.lab(f"{name}_xw8")
    e(f"s_waitcnt vmcnt(8)\ns_branch {name}_xwd")
    g.lab(f"{name}_xw16")
    e("s_waitcnt vmcnt(16)")
    g.lab(f"{name}_xwd")
    e(f"""s_barrier
    s_cmp_gt_u32 s28, 5
    s_cbranch_scc1 {name}_xni
    s_add_u32 s29, s28, 3
    s_and_b32 s30, s29, 3
    s_mul_i32 s30, s30, {UNIT}
    s_add_u32 s30, s30, s27
    s_lshl_b32 s31, s29, 7
    s_add_u32 s31, s31, s26""")
    xissue(None, None)
    g.lab(f"{name}_xni")
    e(f"""s_and_b32 s29, s28, 3
    s_mul_i32 s29, s29, {UNIT}
    v_add_u32 v5, s29, v{VX2}
    v_add_u32 v6, s29, v{VX2+1}""")
    for st in range(4):
        e(f"ds_read_b128 v[{FR+8*st}:{FR+8*st+3}], v5 offset:{st*2048}")
        e(f"ds_read_b128 v[{FR+8*st+4}:{FR+8*st+7}], v6 offset:{st*2048}")
    for st in range(4):
        e(f"s_waitcnt lgkmcnt({6-2*st})")
        for k in range(8):
            e(f"v_dot2_f32_bf16 v{SUM+2*st}, v{FR+8*st+k}, s33, v{SUM+2*st}")
            e(f"v_dot2_f32_bf16 v{SUM+2*st+1}, v{FR+8*st+k}, v{FR+8*st+k}, v{SUM+2*st+1}")
    e(f"s_add_u32 s28, s28, 1\ns_cmp_lt_u32 s28, 9\ns_cbranch_scc1 {name}_xl")
    e("s_nop 3")
    for st in range(4):
        xsum_g(g, SUM + 2*st, 5); xsum_g(g, SUM + 2*st + 1, 5)
        a = SUM + 2*st
        e(f"""v_mul_f32 v{a}, {hx(1.0/576)}, v{a}
        v_mul_f32 v{a+1}, {hx(1.0/576)}, v{a+1}
        v_fma_f32 v{a+1}, -v{a}, v{a}, v{a+1}
        v_max_f32 v{a+1}, 0, v{a+1}
        v_add_f32 v{a+1}, {hx(1e-5)}, v{a+1}
        v_rsq_f32 v{a+1}, v{a+1}""")
    e(f"""s_lshl_b32 s29, s24, 9
    s_add_u32 s29, s29, {A_TAB}
    v_lshl_add_u32 v5, v3, 3, s29
    s_mov_b64 exec, 0xffff
    s_nop 0""")
    for st in range(4):
        e(f"ds_write_b64 v5, v[{SUM+2*st}:{SUM+2*st+1}] offset:{A_STAT - A_TAB + st*128}")
    e(f"s_mov_b64 exec, -1\ns_waitcnt lgkmcnt(0)\ns_branch {name}_ldone")
    g.lab(f"{name}_wload")
    VO = 8
    g.srd_from(8, PTR["wqkv"], 0, D*3*D*2)
    e(f"""s_sub_u32 s25, s24, 2                ; kk
    s_mul_i32 s26, s21, 288
    s_sub_u32 s27, s21, 4
    s_mul_i32 s27, s27, 144
    s_add_u32 s27, s27, 1152
    s_cmp_ge_u32 s21, 4
    s_cselect_b32 s26, s27, s26
    s_cselect_b32 s27, {1152 - 144}, 0""")
    for i in range(9):
        e(f"""v_add_u32 v5, {64*i}, v1
        v_mul_u32_u24 v6, 3641, v5
        v_lshrrev_b32 v6, 16, v6
        v_mul_u32_u24 v7, 18, v6
        v_sub_u32 v5, v5, v7""")
        swap23(g, 6, 7, 20)
        e(f"""v_mul_u32_u24 v7, 3456, v7
        v_lshl_add_u32 v7, v5, 4, v7
        v_add_u32 v20, s27, v7
        v_cmp_le_u32 vcc, 9, v5
        s_nop 1
        v_cndmask_b32 v{VO+i}, v7, v20, vcc""")
    e(f"""s_mul_i32 s29, s25, {32*3456}
    s_add_u32 s26, s26, s29
    s_mul_i32 s27, s25, 9216
    s_add_u32 s27, s27, 16384""")
    def wissue():
        for i in range(9):
            e(f"s_add_u32 m0, s30, {i*1024}")
            e("s_nop 0")
            e(f"buffer_load_dwordx4 v{VO+i}, s[8:11], s31 offen lds")
    for u in range(3):
        e(f"s_add_u32 s30, s27, {u*UNIT}\ns_add_u32 s31, s26, {u*64*3456}")
        wissue()
    VT = 20; CSA = 24; WF2 = 60
    trbase288(g, VT, 5)
    e(f"v_add_u32 v{VT}, s27, v{VT}")
    for i in range(36): e(f"v_mov_b32 v{CSA+i}, 0")
    for i in range(4): e(f"v_mov_b32 v{96+i}, 0x3f803f80")
    e(f"""s_cmp_lg_u32 s25, 0
    s_cbranch_scc1 {name}_nt
    v_lshlrev_b32 v5, 1, v1""")
    for rep in range(2):
        if rep: e("v_add_u32 v5, 128, v5")
        e(f"""v_mul_u32_u24 v6, 3641, v5
        v_lshrrev_b32 v6, 16, v6
        v_mul_u32_u24 v7, 18, v6
        v_sub_u32 v7, v5, v7
        v_mul_u32_u24 v6, 768, v6
        v_lshrrev_b32 v21, 3, v7
        v_lshl_add_u32 v6, v21, 8, v6
        v_and_b32 v7, 7, v7
        v_lshl_add_u32 v6, v7, 1, v6
        v_lshlrev_b32 v7, 1, v5
        v_add_u32 v7, {A_TAB}, v7""")
        if rep: e("s_mov_b64 exec, 0xff")
        e(f"ds_write_b32 v7, v6 offset:{A_NTAB - A_TAB}")
        if rep: e("s_mov_b64 exec, -1")
    g.lab(f"{name}_nt")
    e("s_mov_b32 s28, 0")
    g.lab(f"{name}_wl")
    e(f"""s_cmp_le_u32 s28, 6
    s_cbranch_scc1 {name}_ww18
    s_cmp_eq_u32 s28, 7
    s_cbranch_scc1 {name}_ww9
    s_waitcnt vmcnt(0)
    s_branch {name}_wwd""")
    g.lab(f"{name}_ww9")
    e(f"s_waitcnt vmcnt(9)\ns_branch {name}_wwd")
    g.lab(f"{name}_ww18")
    e("s_waitcnt vmcnt(18)")
    g.lab(f"{name}_wwd")
    e(f"""s_barrier
    s_cmp_gt_u32 s28, 5
    s_cbranch_scc1 {name}_wni
    s_add_u32 s29, s28, 3
    s_and_b32 s30, s29, 3
    s_mul_i32 s30, s30, {UNIT}
    s_add_u32 s30, s30, s27
    s_mul_i32 s31, s29, {64*3456}
    s_add_u32 s31, s31, s26""")
    wissue()
    g.lab(f"{name}_wni")
    e(f"""s_and_b32 s29, s28, 3
    s_mul_i32 s29, s29, {UNIT}
    v_add_u32 v5, s29, v{VT}""")
    for t in range(9):
        a = WF2 + 4*t
        e(f"ds_read_b64_tr_b16 v[{a}:{a+1}], v5 offset:{t*32}")
        e(f"ds_read_b64_tr_b16 v[{a+2}:{a+3}], v5 offset:{t*32 + 8*288}")
    for t in range(9):
        e(f"s_waitcnt lgkmcnt({min(15, 16 - 2*t)})")
        a = WF2 + 4*t; c = CSA + 4*t
        e(f"v_mfma_f32_16x16x32_bf16 v[{c}:{c+3}], v[{a}:{a+3}], v[96:99], v[{c}:{c+3}]")
    e(f"s_add_u32 s28, s28, 1\ns_cmp_lt_u32 s28, 9\ns_cbranch_scc1 {name}_wl")
    e(f"""s_mul_i32 s29, s25, 640
    s_add_u32 s29, s29, {A_TAB}
    v_lshlrev_b32 v5, 4, v4
    v_add_u32 v5, s29, v5
    v_cmp_eq_u32 vcc, 0, v3
    s_nop 7
    s_mov_b64 exec, vcc""")
    for t in range(9):
        e(f"ds_write_b128 v5, v[{CSA+4*t}:{CSA+4*t+3}] offset:{A_CS - A_TAB + t*64}")
    e("s_mov_b64 exec, -1\ns_waitcnt lgkmcnt(0)")
    g.lab(f"{name}_ldone")
    e(f"""s_barrier
    s_barrier
    s_cmp_ge_u32 s21, 4
    s_cbranch_scc0 {name}_join
    s_barrier""")
    g.lab(f"{name}_join")
    e(f"s_cmp_ge_u32 s21, 4\ns_cbranch_scc0 {name}_end")
    e("s_barrier")
    stamp(m, "A:kvtab")
    wait_ready(m)
    e("s_barrier")
    stamp(m, "A:rdy")
    lanes(g)
    g.ws_srd(8, P_WS, "KVT")
    e("s_sub_u32 s26, s21, 4\ns_lshl_b32 s26, s26, 2")
    for rep in range(2):
        e(f"""v_add_u32 v5, {768*rep}, v0
        v_mul_u32_u24 v6, 49057, v5
        v_lshrrev_b32 v6, 24, v6             ; h' = i/342
        v_mul_u32_u24 v7, 342, v6
        v_sub_u32 v7, v5, v7                 ; rem
        v_mul_u32_u24 v8, 3641, v7
        v_lshrrev_b32 v8, 16, v8             ; row
        v_mul_u32_u24 v9, 18, v8
        v_sub_u32 v9, v7, v9                 ; d
        v_mul_u32_u24 v10, 18, v6            ; 18h'
        v_add_u32 v11, v10, v8
        v_add_u32 v11, 8, v11                ; R
        v_cmp_eq_u32 vcc, 18, v8
        s_mov_b64 s[36:37], vcc              ; z row
        v_add_u32 v12, v10, v9               ; C
        v_cndmask_b32 v11, v11, 0, vcc       ; R=0 for z
        v_lshrrev_b32 v14, 4, v12            ; a
        v_lshrrev_b32 v15, 4, v11            ; b'
        v_lshlrev_b32 v16, 1, v14
        v_add_u32 v16, v16, v15
        v_add_u32 v16, 1, v16                ; slot = 2a + b' + 1
        v_add_u32 v17, 12, v14
        v_cmp_le_u32 vcc, 2, v14
        s_and_b64 vcc, vcc, s[36:37]
        s_nop 1
        v_cndmask_b32 v16, v16, v17, vcc
        v_cmp_eq_u32 vcc, 4, v14
        s_and_b64 vcc, vcc, s[36:37]
        s_nop 1
        v_cndmask_b32 v16, v16, 0, vcc
        v_lshlrev_b32 v16, 10, v16
        v_bfe_u32 v17, v11, 2, 2             ; g
        v_lshl_add_u32 v16, v17, 8, v16
        v_and_b32 v17, 15, v12
        v_lshl_add_u32 v16, v17, 4, v16
        v_and_b32 v17, 3, v11
        v_lshl_add_u32 v16, v17, 2, v16
        v_add_u32 v17, 0x10000, v16
        ds_read_b32 v20, v16
        ds_read_b32 v21, v16 offset:16384
        ds_read_b32 v22, v16 offset:32768
        ds_read_b32 v23, v16 offset:49152
        ds_read_b32 v24, v17
        ds_read_b32 v25, v17 offset:16384
        ds_read_b32 v26, v17 offset:32768
        ds_read_b32 v27, v17 offset:49152
        v_add_u32 v6, s26, v6
        v_mul_u32_u24 v6, 20, v6
        v_add_u32 v6, v6, v8
        v_mul_u32_u24 v6, 24, v6
        v_add_u32 v6, v6, v9
        v_lshlrev_b32 v6, 2, v6
        v_cmp_gt_u32 vcc, 1368, v5
        s_waitcnt lgkmcnt(0)
        v_add_f32 v20, v20, v21
        v_add_f32 v22, v22, v23
        v_add_f32 v24, v24, v25
        v_add_f32 v26, v26, v27
        v_add_f32 v20, v20, v22
        v_add_f32 v24, v24, v26
        v_add_f32 v13, v20, v24
        s_and_saveexec_b64 s[34:35], vcc
        s_cbranch_execz {name}_ns{rep}
        buffer_atomic_add_f32 v13, v6, s[8:11], 0 offen""")
        g.lab(f"{name}_ns{rep}")
        e("s_mov_b64 exec, -1")
    g.lab(f"{name}_end")
    stamp(m, "A:epi")


def phase_a_helper(m):
    g = m.g; e = g.e; name = m.lab("H")
    lanes(g)
    e("s_sub_u32 s20, s2, 192               ; hb")
    e("s_mul_i32 s21, s20, 768\nv_add_u32 v5, s21, v0")
    for (reg, wname, kind, per_ng, skip9) in (("IMGO", "wo", "O", 6080, True), ("IMG1", "w1", "nat", 5760, False), ("IMG2", "w2", "nat", 5760, True)):
        L = m.lab("im")
        g.srd_from(8, PTR[wname], 0, D*D*2)
        g.ws_srd(12, P_WS, reg)
        e(f"""v_cvt_f32_u32 v6, v5
        v_add_f32 v6, 0.5, v6
        v_mul_f32 v6, {hx(1.0/per_ng)}, v6
        v_cvt_u32_f32 v6, v6                     ; ng
        v_mul_u32_u24 v7, {per_ng}, v6
        v_sub_u32 v7, v5, v7
        v_mul_u32_u24 v8, 6554, v7
        v_lshrrev_b32 v8, 16, v8
        v_mul_u32_u24 v9, 10, v8
        v_sub_u32 v9, v7, v9                     ; jj""")
        krow_code(g, 8, 10, 12, kind)
        e(f"""v_mul_u32_u24 v11, 1152, v10
        v_mul_u32_u24 v12, 144, v6
        v_add_u32 v11, v11, v12
        v_lshl_add_u32 v11, v9, 4, v11
        v_cmp_gt_u32 vcc, {8*per_ng}, v5""")
        if skip9:
            e("s_mov_b64 s[30:31], vcc\nv_cmp_ne_u32 vcc, 9, v9\ns_and_b64 vcc, vcc, s[30:31]")
        e(f"""s_and_saveexec_b64 s[30:31], vcc
        s_cbranch_execz {L}
        buffer_load_dwordx4 v[20:23], v11, s[8:11], 0 offen
        v_lshlrev_b32 v12, 4, v5
        s_waitcnt vmcnt(0)
        buffer_store_dwordx4 v[20:23], v12, s[12:15], 0 offen sc1""")
        g.lab(L)
        e("s_mov_b64 exec, -1")
    L = m.lab("wb")
    e(f"""s_mul_i32 s21, s20, 12
    s_add_u32 s21, s21, s{S_W}               ; tau
    s_cmp_ge_u32 s21, 296
    s_cbranch_scc1 {L}
    s_cmp_ge_u32 s21, 152
    s_cbranch_scc1 {L}_2""")
    for which in (0, 1):
        if which == 1: g.lab(f"{L}_2")
        wname, reg, kind, sz = (("wo", "IMGO", "O", IMGO_SZ), ("w2", "IMG2", "nat", IMG_SZ))[which]
        g.srd_from(8, PTR[wname], 0, D*D*2)
        g.ws_srd(12, P_WS, reg)
        if which == 1: e("s_sub_u32 s21, s21, 152")
        e("s_lshl_b32 s22x, s21, 2".replace("s22x", "s23"))
        e("v_add_u32 v8, s23, v4")
        krow_code(g, 8, 10, 12, kind)
        e("v_mul_u32_u24 v11, 1152, v10\nv_lshl_add_u32 v11, v3, 4, v11")
        for i in range(4):
            e(f"buffer_load_dwordx4 v[{20+4*i}:{23+4*i}], v11, s[8:11], 0 offen offset:{i*256}")
        e("""v_mov_b32 v36, 0
        v_mov_b32 v37, 0
        v_mov_b32 v38, 0
        v_mov_b32 v39, 0
        s_mov_b64 exec, 0x00ff00ff00ff00ff
        buffer_load_dwordx4 v[36:39], v11, s[8:11], 0 offen offset:1024
        s_mov_b64 exec, -1
        s_mov_b32 s24, 0x3f803f80
        v_mov_b32 v40, 0
        s_waitcnt vmcnt(0)""")
        for r in range(20, 40): e(f"v_dot2_f32_bf16 v40, v{r}, s24, v40")
        e("s_nop 3")
        for sh in (8, 4, 2, 1):
            e(f"v_add_f32_dpp v40, v40, v40 row_ror:{sh} row_mask:0xf bank_mask:0xf\ns_nop 1")
        e(f"""v_mul_f32 v40, {hx(1.0/576)}, v40
        v_cvt_pk_bf16_f32 v41, v40, v40
        v_lshlrev_b32 v42, 16, v41
        v_sub_f32 v42, v40, v42
        v_and_b32 v41, 0xffff, v41
        v_cvt_pk_bf16_f32 v42, v42, v42
        v_lshl_or_b32 v44, v42, 16, v41
        v_mov_b32 v45, 0
        v_mov_b32 v46, 0
        v_mov_b32 v47, 0
        v_mul_u32_u24 v12, 160, v8
        v_mul_u32_u24 v13, {sz}, v3
        v_add_u32 v12, v12, v13
        v_add_u32 v12, 144, v12
        s_mov_b64 exec, 0x00ff00ff00ff00ff
        buffer_store_dwordx4 v[44:47], v12, s[12:15], 0 offen sc1
        s_mov_b64 exec, -1""")
        if which == 0: e(f"s_branch {L}")
    g.lab(L)
    e("s_waitcnt vmcnt(0)\ns_barrier")
    wait_ready(m)
    lanes(g)
    La = m.lab("ha")
    e(f"""s_cmp_lg_u32 s{S_W}, 0
    s_cbranch_scc1 {La}
    s_and_b32 s82, s2, 15
    s_add_u32 s82, s82, {CNT_A}
    s_lshl_b32 s82, s82, 7
    v_mov_b32 v5, s82
    v_mov_b32 v6, 1
    s_mov_b64 exec, 1
    buffer_atomic_add v6, v5, s[{SRD_CNT}:{SRD_CNT+3}], 0 offen sc1
    s_mov_b64 exec, -1""")
    g.lab(La)
    stamp(m, "H:img")
    e(f"""s_and_b32 s21, s20, 7
    s_lshr_b32 s25, s20, 3
    s_mul_i32 s25, s25, 18
    s_add_u32 s25, s25, s{S_W}
    s_mul_i32 s31, s{S_W}, 9216""")
    trbase288(g, 4, 5)
    e("v_add_u32 v4, s31, v4\ns_mov_b32 s38, 0")
    g.ws_srd(16, P_WS, "WP")
    Lp = m.lab("pk")
    g.lab(Lp)
    e(f"""s_cmp_ge_u32 s25, 72
    s_cselect_b32 s23, 1, 0
    s_cselect_b32 s24, 72, 0
    s_sub_u32 s26, s25, s24
    s_lshr_b32 s27, s26, 2               ; ks
    s_and_b32 s26, s26, 3                ; cg
    s_mov_b32 s28, 9216
    s_cmp_eq_u32 s23, 1
    s_cselect_b32 s28, 1152, s28
    s_cselect_b32 s12, s{PTR['w4']}, s{PTR['w3']}
    s_cselect_b32 s13, s{PTR['w4']+1}, s{PTR['w3']+1}
    s_mov_b32 s14, {D*F*2}
    s_mov_b32 s15, 0x20000
    s_mul_i32 s29, s27, {32*9216}
    s_mul_i32 s30, s21, 1152
    s_add_u32 s29, s29, s30
    s_mul_i32 s30, s21, {576*1152}
    s_mul_i32 s32, s27, {32*1152}
    s_add_u32 s30, s30, s32
    s_cmp_eq_u32 s23, 1
    s_cselect_b32 s29, s30, s29
    s_mul_i32 s30, s26, 288
    s_add_u32 s29, s29, s30""")
    for i in range(9):
        e(f"""v_add_u32 v5, {64*i}, v1
        v_mul_u32_u24 v6, 3641, v5
        v_lshrrev_b32 v6, 16, v6
        v_mul_u32_u24 v7, 18, v6
        v_sub_u32 v5, v5, v7""")
        swap23(g, 6, 7, 8)
        e(f"""v_mul_lo_u32 v7, v7, s28
        v_lshl_add_u32 v7, v5, 4, v7
        s_add_u32 m0, s31, {i*1024}
        s_nop 0
        buffer_load_dwordx4 v7, s[12:15], s29 offen lds""")
    e("""s_mul_i32 s32, s21, 12
    s_mul_i32 s33, s26, 3
    s_add_u32 s32, s32, s33
    s_mul_i32 s32, s32, 108
    s_mul_i32 s33, s23, 54
    s_add_u32 s32, s32, s33
    s_mul_i32 s33, s27, 3
    s_add_u32 s32, s32, s33
    s_lshl_b32 s32, s32, 10
    s_waitcnt vmcnt(0)""")
    for t in range(9):
        e(f"ds_read_b64_tr_b16 v[{24+4*t}:{25+4*t}], v4 offset:{t*32}")
        e(f"ds_read_b64_tr_b16 v[{26+4*t}:{27+4*t}], v4 offset:{t*32+2304}")
    e("s_waitcnt lgkmcnt(0)")
    for t in range(9):
        if t % 3 == 0: e(f"s_add_u32 s33, s32, {(t//3)*WP_WAVE}")
        e(f"buffer_store_dwordx4 v[{24+4*t}:{27+4*t}], v2, s[16:19], s33 offen offset:{(t%3)*1024} sc1")
    e(f"""s_add_u32 s38, s38, 1
    s_add_u32 s25, s25, 12
    s_cmp_eq_u32 s38, 1
    s_cselect_b32 s33, 1, 0
    s_cmp_lt_u32 s{S_W}, 6
    s_cselect_b32 s33, s33, 0
    s_cmp_eq_u32 s33, 1
    s_cbranch_scc1 {Lp}""")
    Lw = m.lab("hw")
    e(f"""s_waitcnt vmcnt(0)
    s_barrier
    s_cmp_lg_u32 s{S_W}, 0
    s_cbranch_scc1 {Lw}
    s_add_u32 s82, s21, {CNT_WP}
    s_lshl_b32 s82, s82, 7
    v_mov_b32 v5, s82
    v_mov_b32 v6, 1
    s_mov_b64 exec, 1
    buffer_atomic_add v6, v5, s[{SRD_CNT}:{SRD_CNT+3}], 0 offen sc1
    s_mov_b64 exec, -1""")
    g.lab(Lw)
    stamp(m, "H:wp")

def phase_a(m):
    g = m.g; e = g.e
    L = m.lab("PA")
    e(f"s_cmp_ge_u32 s2, 192\ns_cbranch_scc1 {L}_h")
    phase_a_gemm(m)
    e("s_waitcnt vmcnt(0)\ns_barrier")
    wait_ready(m)
    e(f"""s_cmp_lg_u32 s{S_W}, 0
    s_cbranch_scc1 {L}_j
    s_and_b32 s82, s2, 15
    s_add_u32 s82, s82, {CNT_A}
    s_lshl_b32 s82, s82, 7
    v_mov_b32 v5, s82
    v_mov_b32 v6, 1
    s_mov_b64 exec, 1
    buffer_atomic_add v6, v5, s[{SRD_CNT}:{SRD_CNT+3}], 0 offen sc1
    s_mov_b64 exec, -1
    s_branch {L}_j""")
    g.lab(f"{L}_h")
    phase_a_helper(m)
    g.lab(f"{L}_j")
```

```python
from gl import *

def k_transpose(g, name, src, ld, R, C, dst):
    e = g.e
    gx = (C + 255) // 256
    g.kernel(name, (gx, R, 1), 256, ydim=True)
    e(f"s_cmp_ge_u32 s2, {gx}"); e(f"s_cbranch_scc1 {name}_done")
    g.srd(8, src); g.srd(12, dst)
    e(f"""s_lshl_b32 s16, s2, 8
    v_add_u32 v1, s16, v0
    v_cmp_gt_u32 vcc, {C}, v1
    s_and_saveexec_b64 s[20:21], vcc
    s_cbranch_execz {name}_done
    s_mul_i32 s17, s3, {ld}
    v_add_u32 v2, s17, v1
    v_lshlrev_b32 v2, 1, v2
    buffer_load_ushort v3, v2, s[8:11], 0 offen
    s_mov_b32 s18, {R}
    v_mul_lo_u32 v4, v1, s18
    v_add_u32 v4, s3, v4
    v_lshlrev_b32 v4, 1, v4
    s_waitcnt vmcnt(0)
    buffer_store_short v3, v4, s[12:15], 0 offen""")
    g.lab(f"{name}_done"); e("s_endpgm")

def wave_sum(g, v, tmp):
    e = g.e
    for off in (0x041F, 0x081F, 0x101F, 0x201F, 0x401F):
        e(f"ds_swizzle_b32 v{tmp}, v{v} offset:{off:#x}")
        e("s_waitcnt lgkmcnt(0)")
        e(f"v_add_f32 v{v}, v{v}, v{tmp}")
    e("s_nop 1")
    e(f"v_readlane_b32 s30, v{v}, 0")
    e(f"v_readlane_b32 s31, v{v}, 32")
    e("s_nop 3")
    e(f"v_mov_b32 v{v}, s30")
    e(f"v_add_f32 v{v}, s31, v{v}")

def ln_regs(g, base):
    e = g.e
    e(f"v_mov_b32 v30, v{base}")
    for i in range(1, 9): e(f"v_add_f32 v30, v30, v{base+i}")
    wave_sum(g, 30, 31)
    e(f"v_mul_f32 v30, {hx(1.0/576)}, v30")
    for i in range(9): e(f"v_sub_f32 v{base+i}, v{base+i}, v30")
    e(f"v_mul_f32 v30, v{base}, v{base}")
    for i in range(1, 9): e(f"v_fmac_f32 v30, v{base+i}, v{base+i}")
    wave_sum(g, 30, 31)
    e(f"v_mov_b32 v31, 0x3727c5ac")
    e(f"v_fmac_f32 v31, 0x3ae38e39, v30")
    e("v_rsq_f32 v31, v31")
    e("s_nop 1")
    for i in range(9): e(f"v_mul_f32 v{base+i}, v{base+i}, v31")

def k_ln(g, name, src, dst1, dst2=None):
    e = g.e
    g.kernel(name, (S, 1, 1), 64)
    e(f"s_cmp_ge_u32 s2, {S}"); e(f"s_cbranch_scc1 {name}_done")
    g.srd(8, src); g.srd(12, dst1)
    if dst2: g.srd(16, dst2)
    e("s_mul_i32 s20, s2, 1152"); e("v_lshlrev_b32 v1, 1, v0"); e("v_add_u32 v1, s20, v1")
    for i in range(9): e(f"buffer_load_ushort v{10+i}, v1, s[8:11], 0 offen offset:{i*128}")
    e("s_waitcnt vmcnt(0)")
    for i in range(9): e(f"v_lshlrev_b32 v{10+i}, 16, v{10+i}")
    ln_regs(g, 10)
    for i in range(9): e(f"v_cvt_pk_bf16_f32 v{20+i}, v{10+i}, v{10+i}")
    for i in range(9): e(f"buffer_store_short v{20+i}, v1, s[12:15], 0 offen offset:{i*128}")
    if dst2:
        for i in range(9): e(f"v_lshlrev_b32 v{10+i}, 16, v{20+i}")
        ln_regs(g, 10)
        e("s_waitcnt vmcnt(0)")
        for i in range(9): e(f"v_cvt_pk_bf16_f32 v{20+i}, v{10+i}, v{10+i}")
        for i in range(9): e(f"buffer_store_short v{20+i}, v1, s[16:19], 0 offen offset:{i*128}")
    g.lab(f"{name}_done"); e("s_endpgm")

def gelu(g, v, t1, t2):
    e = g.e
    c1 = 2 * 0.7978845608028654 * 1.4426950408889634
    c2 = c1 * 0.044715
    e(f"""v_mul_f32 v{t1}, v{v}, v{v}
    v_mov_b32 v{t2}, {hx(-c1)}
    v_fmac_f32 v{t2}, {hx(-c2)}, v{t1}
    v_mul_f32 v{t2}, v{t2}, v{v}
    v_exp_f32 v{t2}, v{t2}
    s_nop 0
    v_add_f32 v{t2}, 1.0, v{t2}
    v_rcp_f32 v{t2}, v{t2}
    s_nop 0
    v_mul_f32 v{v}, v{v}, v{t2}""")

def phi(g, v, t1, t2):
    g.e(f"""v_mul_f32 v{t1}, {hx(1.4426950408889634)}, v{v}
    v_exp_f32 v{t1}, v{t1}
    v_add_f32 v{t2}, 1.0, v{v}
    v_cmp_lt_f32 vcc, 0, v{v}
    s_nop 1
    v_cndmask_b32 v{v}, v{t1}, v{t2}, vcc
    v_add_f32 v{v}, {hx(1e-6)}, v{v}""")

def k_gemm(g, name, A, lda, Aoff, Bt, ldb, Boff, M, N, K, C, ldc, ctype, epi=None, res=(), shift=False):
    e = g.e
    gx, gy = N // 32, M // 32
    g.kernel(name, (gx, gy, 1), 64, vgprs=96, ydim=True)
    e(f"s_cmp_ge_u32 s2, {gx}"); e(f"s_cbranch_scc1 {name}_done")
    g.srd(8, A, Aoff); g.srd(12, Bt, Boff); g.srd(16, C)
    for i, r in enumerate(res): g.srd(20 + 4*i, r)
    e(f"""v_and_b32 v1, 15, v0
    v_lshrrev_b32 v2, 4, v0
    s_lshl_b32 s40, s3, 5
    s_lshl_b32 s41, s2, 5
    v_add_u32 v3, s40, v1
    s_mov_b32 s42, {lda*2}
    v_mul_lo_u32 v3, v3, s42
    v_lshl_add_u32 v3, v2, 4, v3
    v_add_u32 v4, {16*lda*2}, v3
    v_add_u32 v5, s41, v1
    s_mov_b32 s42, {ldb*2}
    v_mul_lo_u32 v5, v5, s42
    v_lshl_add_u32 v5, v2, 4, v5
    v_add_u32 v6, {16*ldb*2}, v5""")
    for i in range(16): e(f"v_mov_b32 v{32+i}, 0")
    e("s_mov_b32 s43, 0")
    g.lab(f"{name}_loop")
    e(f"""buffer_load_dwordx4 v[8:11], v3, s[8:11], s43 offen
    buffer_load_dwordx4 v[12:15], v4, s[8:11], s43 offen
    buffer_load_dwordx4 v[16:19], v5, s[12:15], s43 offen
    buffer_load_dwordx4 v[20:23], v6, s[12:15], s43 offen
    s_waitcnt vmcnt(0)
    v_mfma_f32_16x16x32_bf16 v[32:35], v[8:11], v[16:19], v[32:35]
    v_mfma_f32_16x16x32_bf16 v[36:39], v[8:11], v[20:23], v[36:39]
    v_mfma_f32_16x16x32_bf16 v[40:43], v[12:15], v[16:19], v[40:43]
    v_mfma_f32_16x16x32_bf16 v[44:47], v[12:15], v[20:23], v[44:47]
    s_add_u32 s43, s43, 64
    s_cmp_lt_u32 s43, {K*2}
    s_cbranch_scc1 {name}_loop
    s_nop 15
    v_lshlrev_b32 v7, 2, v2
    v_add_u32 v7, s40, v7
    s_mov_b32 s42, {ldc}
    v_mul_lo_u32 v7, v7, s42
    v_add_u32 v7, v7, v1
    v_add_u32 v7, s41, v7""")
    es = 2 if ctype == "bf16" else 4
    for mi in range(2):
        for ni in range(2):
            if shift:
                e(f"""s_lshl_b32 s44, s2, 1
                s_add_u32 s44, s44, {ni}
                s_mul_i32 s44, s44, 57
                s_lshr_b32 s44, s44, 9
                s_lshr_b32 s45, s44, 1
                s_add_u32 s45, s45, 1
                s_mul_i32 s45, s45, {ldc}
                s_and_b32 s44, s44, 1
                s_sub_u32 s46, 0, s45
                s_cmp_eq_u32 s44, 1
                s_cselect_b32 s45, s46, s45""")
            for r in range(4):
                acc = 32 + (mi*2+ni)*4 + r
                eo = (mi*16 + r) * ldc + ni*16
                e(f"v_add_u32 v24, {eo}, v7")
                for i, rr in enumerate(res):
                    res_es = 4 if rr == "NUM" else 2
                    e(f"v_lshlrev_b32 v25, {2 if res_es==4 else 1}, v24")
                    e(f"buffer_load_{'dword' if res_es==4 else 'ushort'} v{26+i}, v25, s[{20+4*i}:{23+4*i}], 0 offen")
                e("s_waitcnt vmcnt(0)")
                if epi == "gelu": gelu(g, acc, 28, 29)
                elif epi == "phi": phi(g, acc, 28, 29)
                elif epi == "div":
                    e(f"v_add_f32 v{acc}, {hx(1e-6)}, v{acc}\nv_rcp_f32 v{acc}, v{acc}\ns_nop 0\nv_mul_f32 v{acc}, v{acc}, v26")
                if epi != "div":
                    for i, rr in enumerate(res):
                        e(f"v_lshlrev_b32 v{26+i}, 16, v{26+i}\nv_add_f32 v{acc}, v{acc}, v{26+i}")
                if shift: e(f"v_add_u32 v24, s45, v24")
                e(f"v_lshlrev_b32 v25, {1 if es==2 else 2}, v24")
                if es == 2:
                    e(f"v_cvt_pk_bf16_f32 v{acc}, v{acc}, v{acc}\nbuffer_store_short v{acc}, v25, s[16:19], 0 offen")
                else:
                    e(f"buffer_store_dword v{acc}, v25, s[16:19], 0 offen")
    g.lab(f"{name}_done"); e("s_endpgm")

def k_fill(g, name):
    e = g.e
    g.kernel(name, (256, 1, 1), 256)
    e("s_cmp_ge_u32 s2, 256"); e(f"s_cbranch_scc1 {name}_done")
    g.srd(8, "VT", 576*2048*2); g.srd(12, "HSIN")
    e(f"""s_lshl_b32 s16, s2, 8
    v_add_u32 v1, s16, v0
    v_lshlrev_b32 v2, 1, v1
    v_mov_b32 v3, 0x3f80
    buffer_store_short v3, v2, s[8:11], 0 offen
    v_mov_b32 v3, 0
    v_cmp_gt_u32 vcc, 1152, v1
    s_and_saveexec_b64 s[20:21], vcc
    s_cbranch_execz {name}_done
    buffer_store_short v3, v2, s[12:15], 0 offen
    v_add_u32 v2, {2046*1152}, v2
    buffer_store_short v3, v2, s[12:15], 0 offen""")
    g.lab(f"{name}_done"); e("s_endpgm")

def k_bd(g, name):
    e = g.e
    g.kernel(name, (3, 576, 1), 256, ydim=True)
    e("s_cmp_ge_u32 s2, 3"); e(f"s_cbranch_scc1 {name}_done")
    g.srd(8, "KV"); g.srd(12, "BDt"); g.srd(16, "Zt")
    e(f"""s_lshl_b32 s20, s2, 8
    v_add_u32 v1, s20, v0
    v_cmp_gt_u32 vcc, 576, v1
    s_and_saveexec_b64 s[22:23], vcc
    s_cbranch_execz {name}_done
    v_mul_u32_u24 v2, 3641, v1
    v_lshrrev_b32 v2, 16, v2
    s_mul_i32 s21, s3, 3641
    s_lshr_b32 s21, s21, 16
    v_mul_u32_u24 v3, 608, v1
    v_add_u32 v4, s3, v3
    v_lshlrev_b32 v4, 2, v4
    buffer_load_dword v5, v4, s[8:11], 0 offen
    v_add_u32 v4, 576, v3
    v_lshlrev_b32 v4, 2, v4
    buffer_load_dword v6, v4, s[8:11], 0 offen
    v_cmp_eq_u32 vcc, s21, v2
    s_waitcnt vmcnt(0)
    v_cndmask_b32 v5, 0, v5, vcc
    v_cndmask_b32 v6, 0, v6, vcc
    v_cvt_pk_bf16_f32 v5, v5, v5
    v_cvt_pk_bf16_f32 v6, v6, v6
    s_mul_i32 s21, s3, 576
    v_add_u32 v4, s21, v1
    v_lshlrev_b32 v4, 1, v4
    buffer_store_short v5, v4, s[12:15], 0 offen
    buffer_store_short v6, v4, s[16:19], 0 offen""")
    g.lab(f"{name}_done"); e("s_endpgm")

def k_center_fm(g, name, src, res, dstc, dstbase, dstss, dstmean=None):
    e = g.e
    g.kernel(name, (S, 1, 1), 64)
    e(f"s_cmp_ge_u32 s2, {S}"); e(f"s_cbranch_scc1 {name}_done")
    g.srd(8, src); g.srd(12, dstc); g.srd(24, dstss)
    if res: g.srd(16, res); g.srd(20, dstbase)
    e("s_mul_i32 s40, s2, 1152"); e("v_lshlrev_b32 v1, 1, v0"); e("v_add_u32 v1, s40, v1")
    for i in range(9): e(f"buffer_load_ushort v{10+i}, v1, s[8:11], 0 offen offset:{i*128}")
    if res:
        for i in range(9): e(f"buffer_load_ushort v{40+i}, v1, s[16:19], 0 offen offset:{i*128}")
    e("s_waitcnt vmcnt(0)")
    for i in range(9): e(f"v_lshlrev_b32 v{10+i}, 16, v{10+i}")
    e(f"""s_lshr_b32 s41, s2, 4
    s_mul_i32 s41, s41, {18*1024}
    s_and_b32 s42, s2, 15
    s_lshl_b32 s42, s42, 4
    s_add_u32 s41, s41, s42
    v_lshrrev_b32 v2, 5, v0
    v_lshlrev_b32 v2, 10, v2
    v_bfe_u32 v3, v0, 2, 2
    v_lshl_add_u32 v2, v3, 8, v2
    v_bfe_u32 v3, v0, 4, 1
    v_lshl_add_u32 v2, v3, 3, v2
    v_and_b32 v3, 3, v0
    v_lshl_add_u32 v2, v3, 1, v2
    v_add_u32 v2, s41, v2""")
    if res:
        for i in range(9):
            e(f"v_lshlrev_b32 v{40+i}, 16, v{40+i}\nv_add_f32 v{40+i}, v{40+i}, v{10+i}\nv_cvt_pk_bf16_f32 v{40+i}, v{40+i}, v{40+i}")
            e(f"v_add_u32 v4, {i*2048}, v2\nbuffer_store_short v{40+i}, v4, s[20:23], 0 offen")
    e(f"v_mov_b32 v30, v10")
    for i in range(1, 9): e(f"v_add_f32 v30, v30, v{10+i}")
    wave_sum(g, 30, 31)
    e(f"v_mul_f32 v30, {hx(1.0/576)}, v30")
    if dstmean:
        g.srd(32, dstmean)
        e("s_lshl_b32 s43, s2, 2\nv_mov_b32 v4, s43\nbuffer_store_dword v30, v4, s[32:35], 0 offen")
    for i in range(9): e(f"v_sub_f32 v{10+i}, v{10+i}, v30")
    e(f"v_mul_f32 v30, v10, v10")
    for i in range(1, 9): e(f"v_fmac_f32 v30, v{10+i}, v{10+i}")
    wave_sum(g, 30, 31)
    for i in range(9):
        e(f"v_cvt_pk_bf16_f32 v{20+i}, v{10+i}, v{10+i}\nv_add_u32 v4, {i*2048}, v2\nbuffer_store_short v{20+i}, v4, s[12:15], 0 offen")
    e(f"""v_cmp_eq_u32 vcc, 0, v0
    s_nop 1
    v_cndmask_b32 v30, 0, v30, vcc
    s_lshl_b32 s43, s2, 7
    v_lshlrev_b32 v4, 2, v0
    v_add_u32 v4, s43, v4
    v_cmp_gt_u32 vcc, 32, v0
    s_and_saveexec_b64 s[44:45], vcc
    buffer_store_dword v30, v4, s[24:27], 0 offen""")
    g.lab(f"{name}_done"); e("s_endpgm")

def k_unfm_shift(g, name, src, dst):
    e = g.e
    g.kernel(name, (S, 1, 1), 64)
    e(f"s_cmp_ge_u32 s2, {S}"); e(f"s_cbranch_scc1 {name}_done")
    g.srd(8, src); g.srd(12, dst)
    e(f"""s_lshr_b32 s41, s2, 4
    s_mul_i32 s41, s41, {18*1024}
    s_and_b32 s42, s2, 15
    s_lshl_b32 s42, s42, 4
    s_add_u32 s41, s41, s42
    v_lshrrev_b32 v2, 5, v0
    v_lshlrev_b32 v2, 10, v2
    v_bfe_u32 v3, v0, 2, 2
    v_lshl_add_u32 v2, v3, 8, v2
    v_bfe_u32 v3, v0, 4, 1
    v_lshl_add_u32 v2, v3, 3, v2
    v_and_b32 v3, 3, v0
    v_lshl_add_u32 v2, v3, 1, v2
    v_add_u32 v2, s41, v2""")
    for i in range(9):
        e(f"v_add_u32 v4, {i*2048}, v2\nbuffer_load_ushort v{10+i}, v4, s[8:11], 0 offen")
    e("s_waitcnt vmcnt(0)")
    for i in range(9):
        e(f"""v_add_u32 v5, {64*i}, v0
        v_mul_u32_u24 v6, 7282, v5
        v_lshrrev_b32 v6, 20, v6
        v_lshrrev_b32 v7, 1, v6
        v_add_u32 v7, 1, v7
        v_and_b32 v6, 1, v6
        v_sub_u32 v8, 0, v7
        v_cmp_eq_u32 vcc, 1, v6
        s_nop 1
        v_cndmask_b32 v7, v7, v8, vcc
        v_add_u32 v7, s2, v7
        v_mul_lo_u32 v7, v7, s50
        v_lshl_add_u32 v7, v5, 1, v7
        buffer_store_short v{10+i}, v7, s[12:15], 0 offen""".replace("v_mul_lo_u32 v7, v7, s50", "s_movk_i32 s50, 1152\nv_mul_lo_u32 v7, v7, s50"))
    g.lab(f"{name}_done"); e("s_endpgm")

def k_wbar(g, name, w, dst):
    e = g.e
    g.kernel(name, (576, 1, 1), 64)
    e(f"s_cmp_ge_u32 s2, 576"); e(f"s_cbranch_scc1 {name}_done")
    g.srd(8, w); g.srd(12, dst)
    e("s_mul_i32 s20, s2, 1152"); e("v_lshlrev_b32 v1, 1, v0"); e("v_add_u32 v1, s20, v1")
    for i in range(9): e(f"buffer_load_ushort v{10+i}, v1, s[8:11], 0 offen offset:{i*128}")
    e("s_waitcnt vmcnt(0)")
    for i in range(9): e(f"v_lshlrev_b32 v{10+i}, 16, v{10+i}")
    e(f"v_mov_b32 v30, v10")
    for i in range(1, 9): e(f"v_add_f32 v30, v30, v{10+i}")
    wave_sum(g, 30, 31)
    e(f"""v_mul_f32 v30, {hx(1.0/576)}, v30
    v_cvt_pk_bf16_f32 v32, v30, v30
    v_lshlrev_b32 v33, 16, v32
    v_sub_f32 v33, v30, v33
    v_and_b32 v32, 0xffff, v32
    v_cvt_pk_bf16_f32 v33, v33, v33
    v_lshl_or_b32 v36, v33, 16, v32
    v_mov_b32 v37, 0
    v_mov_b32 v38, 0
    v_mov_b32 v39, 0
    s_lshl_b32 s20, s2, 4
    v_mov_b32 v4, s20
    s_mov_b64 exec, 1
    buffer_store_dwordx4 v[36:39], v4, s[12:15], 0 offen""")
    g.lab(f"{name}_done"); e("s_endpgm")
```

```python
from gl import *

IMG_SZ = 576 * 160
IMGO_SZ = 608 * 160

def krow_code(g, vi, vk, t, kind):
    e = g.e
    e(f"""v_and_b32 v{t}, 31, v{vi}
    v_and_b32 v{t+1}, 0x13, v{t}
    v_and_b32 v{t+2}, 4, v{t}
    v_lshl_or_b32 v{t+1}, v{t+2}, 1, v{t+1}
    v_and_b32 v{t+2}, 8, v{t}
    v_lshrrev_b32 v{t+2}, 1, v{t+2}
    v_or_b32 v{t+1}, v{t+1}, v{t+2}
    v_lshrrev_b32 v{t}, 5, v{vi}             ; ks""")
    if kind == "nat":
        e(f"v_lshl_add_u32 v{vk}, v{t}, 5, v{t+1}")
        return
    e(f"""v_mov_b32 v{t+2}, 0                 ; H0
    v_mov_b32 v{t+3}, 0                       ; ks0
    v_mov_b32 v{t+4}, 6                       ; nmain
    v_cmp_le_u32 vcc, 7, v{t}
    s_nop 1
    v_cndmask_b32 v{t+2}, v{t+2}, 12, vcc
    v_cndmask_b32 v{t+3}, v{t+3}, 7, vcc
    v_cndmask_b32 v{t+4}, v{t+4}, 5, vcc
    v_cmp_le_u32 vcc, 13, v{t}
    s_nop 1
    v_cndmask_b32 v{t+2}, v{t+2}, 22, vcc
    v_cndmask_b32 v{t+3}, v{t+3}, 13, vcc
    v_sub_u32 v{t}, v{t}, v{t+3}              ; li
    v_lshrrev_b32 v{t+3}, 3, v{t+1}           ; g
    v_and_b32 v{t+1}, 7, v{t+1}               ; j
    v_lshl_add_u32 v{vk}, v{t}, 1, v{t+2}
    v_lshrrev_b32 v{t+5}, 2, v{t+1}
    v_add_u32 v{vk}, v{vk}, v{t+5}
    v_mul_u32_u24 v{vk}, 18, v{vk}
    v_lshl_add_u32 v{vk}, v{t+3}, 2, v{vk}
    v_and_b32 v{t+5}, 3, v{t+1}
    v_add_u32 v{vk}, v{vk}, v{t+5}
    v_cmp_eq_u32 vcc, v{t}, v{t+4}
    v_lshrrev_b32 v{t}, 1, v{t+1}
    v_lshl_add_u32 v{t}, v{t}, 2, v{t+3}      ; hl
    v_lshlrev_b32 v{t+4}, 1, v{t+4}           ; nh
    v_add_u32 v{t+2}, v{t+2}, v{t}            ; head
    v_mul_u32_u24 v{t+2}, 18, v{t+2}
    v_and_b32 v{t+1}, 1, v{t+1}
    v_add_u32 v{t+2}, v{t+2}, v{t+1}
    v_add_u32 v{t+2}, 16, v{t+2}
    v_cndmask_b32 v{vk}, v{vk}, v{t+2}, vcc
    s_mov_b64 s[50:51], vcc
    v_cmp_ge_u32 vcc, v{t}, v{t+4}
    s_and_b64 vcc, vcc, s[50:51]
    v_mov_b32 v{t+1}, 0x100000
    s_nop 1
    v_cndmask_b32 v{vk}, v{vk}, v{t+1}, vcc""")

def k_img(g, name, w, dst, kind, wb):
    e = g.e
    nrows = 608 if kind == "O" else 576
    per_ng = nrows * 10
    tot = 8 * per_ng
    nwg = (tot + 255) // 256
    g.kernel(name, (nwg, 1, 1), 256, vgprs=32)
    e(f"s_cmp_ge_u32 s2, {nwg}\ns_cbranch_scc1 {name}_done")
    g.srd(8, w); g.srd(12, dst)
    if wb: g.srd(16, wb)
    e(f"""s_lshl_b32 s20, s2, 8
    v_add_u32 v1, s20, v0                    ; c
    v_cvt_f32_u32 v2, v1
    v_add_f32 v2, 0.5, v2
    v_mul_f32 v2, {hx(1.0/per_ng)}, v2
    v_cvt_u32_f32 v2, v2                     ; ng
    v_mul_u32_u24 v3, {per_ng}, v2
    v_sub_u32 v3, v1, v3
    v_mul_u32_u24 v4, 6554, v3
    v_lshrrev_b32 v4, 16, v4                 ; row
    v_mul_u32_u24 v5, 10, v4
    v_sub_u32 v5, v3, v5                     ; jj""")
    krow_code(g, 4, 6, 10, "O" if kind == "O" else "nat")
    e(f"""v_mul_u32_u24 v7, 1152, v6
    v_mul_u32_u24 v8, 144, v2
    v_add_u32 v7, v7, v8
    v_lshl_add_u32 v7, v5, 4, v7
    buffer_load_dwordx4 v[20:23], v7, s[8:11], 0 offen""")
    if wb:
        e("v_lshlrev_b32 v8, 4, v6\nbuffer_load_dwordx4 v[24:27], v8, s[16:19], 0 offen")
    else:
        e("v_mov_b32 v24, 0\nv_mov_b32 v25, 0\nv_mov_b32 v26, 0\nv_mov_b32 v27, 0")
    e(f"""v_cmp_eq_u32 vcc, 9, v5
    s_waitcnt vmcnt(0)
    v_cndmask_b32 v20, v20, v24, vcc
    v_cndmask_b32 v21, v21, v25, vcc
    v_cndmask_b32 v22, v22, v26, vcc
    v_cndmask_b32 v23, v23, v27, vcc
    v_lshlrev_b32 v9, 4, v1
    buffer_store_dwordx4 v[20:23], v9, s[12:15], 0 offen""")
    g.lab(f"{name}_done"); e("s_endpgm")

def k_pqconv(g, name):
    e = g.e
    tot = 128 * 32 * 3 * 16 * 8
    nwg = tot // 256
    g.kernel(name, (nwg, 1, 1), 256, vgprs=32)
    e(f"s_cmp_ge_u32 s2, {nwg}\ns_cbranch_scc1 {name}_done")
    g.srd(8, "PQ"); g.srd(12, "PQP")
    e(f"""s_lshl_b32 s20, s2, 8
    v_add_u32 v1, s20, v0
    v_cvt_f32_u32 v2, v1
    v_add_f32 v2, 0.5, v2
    v_mul_f32 v2, {hx(1.0/384)}, v2
    v_cvt_u32_f32 v2, v2                     ; blk
    v_mul_u32_u24 v3, 384, v2
    v_sub_u32 v3, v1, v3
    v_lshrrev_b32 v4, 7, v3                  ; g
    v_bfe_u32 v5, v3, 3, 4                   ; s
    v_and_b32 v6, 7, v3                      ; j
    v_lshl_add_u32 v6, v4, 3, v6             ; d
    v_lshrrev_b32 v7, 5, v2                  ; st
    v_and_b32 v8, 31, v2                     ; h
    v_lshl_add_u32 v7, v7, 4, v5             ; row
    v_mul_u32_u24 v7, 576, v7
    v_mul_u32_u24 v8, 18, v8
    v_add_u32 v7, v7, v8
    v_add_u32 v7, v7, v6
    v_lshlrev_b32 v7, 1, v7
    buffer_load_ushort v9, v7, s[8:11], 0 offen
    v_cmp_gt_u32 vcc, 18, v6
    s_waitcnt vmcnt(0)
    v_cndmask_b32 v9, 0, v9, vcc
    v_lshlrev_b32 v1, 1, v1
    buffer_store_short v9, v1, s[12:15], 0 offen""")
    g.lab(f"{name}_done"); e("s_endpgm")

def k_kvtconv(g, name):
    e = g.e
    tot = 32 * 20 * 24
    nwg = tot // 256
    g.kernel(name, (nwg, 1, 1), 256, vgprs=32)
    e(f"s_cmp_ge_u32 s2, {nwg}\ns_cbranch_scc1 {name}_done")
    g.srd(8, "KV"); g.srd(12, "KVT")
    e(f"""s_lshl_b32 s20, s2, 8
    v_add_u32 v1, s20, v0
    v_cvt_f32_u32 v2, v1
    v_add_f32 v2, 0.5, v2
    v_mul_f32 v3, {hx(1.0/480)}, v2
    v_cvt_u32_f32 v3, v3                     ; h
    v_mul_u32_u24 v4, 480, v3
    v_sub_u32 v4, v1, v4
    v_cvt_f32_u32 v5, v4
    v_add_f32 v5, 0.5, v5
    v_mul_f32 v5, {hx(1.0/24)}, v5
    v_cvt_u32_f32 v5, v5                     ; e
    v_mul_u32_u24 v6, 24, v5
    v_sub_u32 v6, v4, v6                     ; d
    v_mul_u32_u24 v7, 18, v3                 ; 18h
    v_add_u32 v8, v7, v6                     ; dg
    v_mul_u32_u24 v8, 608, v8
    v_add_u32 v9, v7, v5                     ; eg
    v_cmp_eq_u32 vcc, 18, v5
    v_mov_b32 v10, 576
    s_nop 0
    v_cndmask_b32 v9, v9, v10, vcc
    v_add_u32 v8, v8, v9
    v_lshlrev_b32 v8, 2, v8
    buffer_load_dword v11, v8, s[8:11], 0 offen
    v_cmp_gt_u32 vcc, 18, v6
    s_mov_b64 s[30:31], vcc
    v_cmp_gt_u32 vcc, 19, v5
    s_and_b64 vcc, vcc, s[30:31]
    s_waitcnt vmcnt(0)
    s_nop 1
    v_cndmask_b32 v11, 0, v11, vcc
    v_lshlrev_b32 v1, 2, v1
    buffer_store_dword v11, v1, s[12:15], 0 offen""")
    g.lab(f"{name}_done"); e("s_endpgm")

def k_rowmean(g, name, src, dst):
    from scaff import wave_sum
    e = g.e
    g.kernel(name, (S, 1, 1), 64)
    e(f"s_cmp_ge_u32 s2, {S}"); e(f"s_cbranch_scc1 {name}_done")
    g.srd(8, src); g.srd(12, dst)
    e("s_mul_i32 s20, s2, 1152"); e("v_lshlrev_b32 v1, 1, v0"); e("v_add_u32 v1, s20, v1")
    for i in range(9): e(f"buffer_load_ushort v{10+i}, v1, s[8:11], 0 offen offset:{i*128}")
    e("s_waitcnt vmcnt(0)")
    for i in range(9): e(f"v_lshlrev_b32 v{10+i}, 16, v{10+i}")
    e(f"v_mov_b32 v30, v10")
    for i in range(1, 9): e(f"v_add_f32 v30, v30, v{10+i}")
    wave_sum(g, 30, 31)
    e(f"v_mul_f32 v30, {hx(1.0/576)}, v30\ns_lshl_b32 s20, s2, 2\nv_mov_b32 v4, s20\nbuffer_store_dword v30, v4, s[12:15], 0 offen")
    g.lab(f"{name}_done"); e("s_endpgm")
```

```python
import sys, os
from gl import *
import mega2 as mega
from mega2 import *
import phasea
from phasea import *
mega.STAMP = int(os.environ.get("STAMP", 0))
mega.MAPR = int(os.environ.get('MAPR', 16))
g = Gen()
for n, b in [("WP", 96*108*1024), ("X1C", S*D*2), ("BASE", S*D*2), ("SS1", S*32*4), ("PART", 8*S*D*2),
             ("HC", S*D*2), ("SSH", S*32*4), ("MEANH", S*4), ("HH", S*D*2), ("CNT", 768*32),
             ("PQP", 128*32*768), ("KVT", 32*20*24*4), ("XST", S*4), ("IMGO", 8*IMGO_SZ), ("IMG1", 8*IMG_SZ), ("IMG2", 8*IMG_SZ)]:
    g.wsalloc(n, b)
NAMEK = NAME + "_kernel"
g.kernel(NAMEK, (256, 1, 1), 768, vgprs=168, lds=LDS_TOTAL, sgprs=96, launch=False)
g.launches.append(f"; @launch grid=(256,1,1) block=(768,1,1) lds={LDS_TOTAL}")
m = M(g, "mega")
prologue(m)
stamp(m, "start")
init_counters(m, extra_zero="KVT")
phase_a(m)
phase_b(m)
phase_c(m)
phase_d(m, check_wp=True)
phase_ef(m)
phase_g(m)
stamp_flush(m, (1, 200))
g.lab("mega_done"); g.e("s_endpgm")
g.write(sys.argv[1], "ws5.json")
if mega.STAMP: open("stamps5.txt", "w").write(",".join(m.names))
```

```python
from gl import *
C1 = 2 * 0.7978845608028654 * 1.4426950408889634
C2 = C1 * 0.044715
WP_WAVE = 108 * 1024
FMSZ = S * D * 2
STAMP = 0
MAPR = 16
SPIN_MAX = 400000
CODE_PREFETCH = 1
POLL_SLEEP = 1
WPT2 = 0
PKG = 0
PRIO = (3, 2, 0)
P_WS = 4
PTR = dict(x=60, wqkv=62, wo=64, w1=66, w2=68, w3=70, w4=72, out=76, dbg=78)
S_W = 22
SRD_CNT = 84
SRD_DBG = 88
VST = 167
CNT_B, CNT_C, CNT_D, CNT_E, CNT_G = 0, 32, 64, 96, 128
NCNT = 160

class M:
    def __init__(self, g, name):
        self.g = g; self.name = name; self.n = 0; self.nst = 0
    def lab(self, base):
        self.n += 1
        return f"{self.name}_{base}{self.n}"

def stamp(m, label=None):
    if STAMP != 1: return
    g = m.g
    g.e(f"s_memtime s[80:81]\ns_waitcnt lgkmcnt(0)\nv_writelane_b32 v{VST}, s80, {m.nst}")
    m.names = getattr(m, "names", []); m.names.append(label or str(m.nst))
    m.nst += 1

def rt_all(m, idx):
    if not STAMP: return
    g = m.g; e = g.e
    L = m.lab("rt")
    e(f"""s_cmp_lg_u32 s{S_W}, 0
    s_cbranch_scc1 {L}
    s_memrealtime s[80:81]
    s_lshl_b32 s83, s2, 2
    s_add_u32 s83, s83, {16384 + idx*1024}
    s_mov_b32 s{SRD_DBG+2}, 0x100000
    s_waitcnt lgkmcnt(0)
    v_mov_b32 v166, s80
    v_mov_b32 v164, s83
    s_mov_b64 exec, 1
    buffer_store_dword v166, v164, s[{SRD_DBG}:{SRD_DBG+3}], 0 offen
    s_mov_b64 exec, -1""")
    g.lab(L)
    m.rtn = getattr(m, "rtn", 0) + 1

def stamp_flush(m, wgs=(0,)):
    if STAMP != 1: return
    g = m.g; e = g.e
    for k, wg in enumerate(wgs):
        L = m.lab("sf")
        e(f"""s_cmp_lg_u32 s2, {wg}
        s_cbranch_scc1 {L}
        s_lshl_b32 s80, s{S_W}, 8
        s_add_u32 s80, s80, {4096 + k*4096}
        v_and_b32 v1, 63, v0
        v_lshlrev_b32 v1, 2, v1
        s_mov_b32 s{SRD_DBG+2}, 0x100000
        buffer_store_dword v{VST}, v1, s[{SRD_DBG}:{SRD_DBG+3}], s80 offen""")
        g.lab(L)

def prologue(m, nwg=256):
    g = m.g; e = g.e
    e(f"s_cmp_ge_u32 s2, {nwg}\ns_cbranch_scc1 {m.name}_done")
    if CODE_PREFETCH:
        e(f"""s_getpc_b64 s[6:7]
        {m.name}_pc0:
        v_lshlrev_b32 v1, 7, v0
        v_cmp_gt_u32 vcc, {m.name}_end-{m.name}_pc0, v1
        s_and_saveexec_b64 s[8:9], vcc
        global_load_dword v165, v1, s[6:7]
        s_mov_b64 exec, s[8:9]""")
    e(f"""s_load_dwordx16 s[{PTR['x']-4}:{PTR['x']+11}], s[0:1], 0
    s_load_dwordx4 s[{PTR['out']}:{PTR['out']+3}], s[0:1], 64
    s_load_dwordx2 s[4:5], s[0:1], 80""".replace(f"s_load_dwordx16 s[{PTR['x']-4}:{PTR['x']+11}], s[0:1], 0", "s_load_dwordx16 s[36:51], s[0:1], 0"))
    e(f"""v_lshrrev_b32 v1, 6, v0
    s_nop 0
    v_readfirstlane_b32 s{S_W}, v1""")
    if STAMP: e(f"v_mov_b32 v{VST}, 0")
    e("s_waitcnt lgkmcnt(0)")
    for nm, idx in (("x", 0), ("wqkv", 1), ("wo", 2), ("w1", 4), ("w2", 5), ("w3", 6), ("w4", 7)):
        e(f"s_mov_b64 s[{PTR[nm]}:{PTR[nm]+1}], s[{36+2*idx}:{37+2*idx}]")
    e(f"""v_mov_b32 v2, {LDS_SIG}
    v_and_b32 v3, 15, v0
    v_lshl_add_u32 v2, v3, 2, v2
    v_mov_b32 v3, 0
    ds_write_b32 v2, v3""")
    g.ws_srd(SRD_CNT, P_WS, "CNT")
    g.srd_from(SRD_DBG, PTR["dbg"], 0, 256)

def init_counters(m, extra_zero=None):
    g = m.g; e = g.e
    L = m.lab("ic")
    e(f"""s_cmp_lg_u32 s2, 0
    s_cbranch_scc1 {L}
    v_lshlrev_b32 v1, 4, v0
    v_mov_b32 v4, 0
    v_mov_b32 v5, 0
    v_mov_b32 v6, 0
    v_mov_b32 v7, 0
    buffer_store_dwordx4 v[4:7], v1, s[{SRD_CNT}:{SRD_CNT+3}], 0 offen sc1
    v_add_u32 v1, {768*16}, v1
    buffer_store_dwordx4 v[4:7], v1, s[{SRD_CNT}:{SRD_CNT+3}], 0 offen sc1""")
    if extra_zero:
        g.ws_srd(8, P_WS, extra_zero)
        e("v_lshlrev_b32 v1, 4, v0")
        for k in range(5):
            e(f"buffer_store_dwordx4 v[4:7], v1, s[8:11], 0 offen sc1\nv_add_u32 v1, {768*16}, v1")
    e(f"""s_waitcnt vmcnt(0)
    s_barrier
    s_cmp_lg_u32 s{S_W}, 0
    s_cbranch_scc1 {L}
    v_mov_b32 v4, 1
    v_mov_b32 v1, 0
    s_mov_b64 exec, 1
    buffer_store_dword v4, v1, s[{SRD_DBG}:{SRD_DBG+3}], 0 offen sc1
    s_mov_b64 exec, -1""")
    g.lab(L)

def poll(m, srd, voff_setup, nlanes, target, tmp=1, vtarget=None):
    g = m.g; e = g.e
    L = m.lab("pl")
    e(voff_setup)
    e(f"s_mov_b64 exec, {(1 << nlanes) - 1:#x}" if nlanes < 32 else "s_mov_b64 exec, -1")
    e("s_mov_b32 s82, 0")
    g.lab(L)
    tg = f"v{vtarget}" if vtarget is not None else str(target)
    e(f"""buffer_load_dword v{tmp+1}, v{tmp}, s[{srd}:{srd+3}], 0 offen sc1
    s_waitcnt vmcnt(0)
    v_cmp_gt_u32 vcc, {tg}, v{tmp+1}
    s_add_u32 s82, s82, 1
    s_cmp_gt_u32 s82, {SPIN_MAX}
    s_cbranch_scc1 {L}_x
    s_cbranch_vccz {L}_x
    {"s_sleep 1" if POLL_SLEEP else ""}
    s_branch {L}""")
    g.lab(L + "_x")
    e("s_mov_b64 exec, -1")

def arrive_global(m):
    g = m.g; e = g.e
    L = m.lab("ag")
    e(f"""s_cmp_lg_u32 s{S_W}, 0
    s_cbranch_scc1 {L}
    v_mov_b32 v5, {CNT_G * 128}
    v_mov_b32 v6, 1
    s_mov_b64 exec, 1
    buffer_atomic_add v6, v5, s[{SRD_CNT}:{SRD_CNT+3}], 0 offen sc0 sc1
    s_waitcnt vmcnt(0)
    v_readfirstlane_b32 s82, v6
    s_cmp_lg_u32 s82, 255
    s_cbranch_scc1 {L}_n
    v_mov_b32 v5, {(CNT_G + 1) * 128}
    v_mov_b32 v6, 1
    buffer_store_dword v6, v5, s[{SRD_CNT}:{SRD_CNT+3}], 0 offen sc1""")
    g.lab(L + "_n")
    e("s_mov_b64 exec, -1")
    g.lab(L)

def wait_ready(m):
    g = m.g; e = g.e
    L = m.lab("wr")
    e(f"s_cmp_lg_u32 s{S_W}, 0\ns_cbranch_scc1 {L}")
    poll(m, SRD_DBG, "v_mov_b32 v1, 0", 1, 1)
    g.lab(L)

def signal(m, scnt):
    g = m.g; e = g.e
    L = m.lab("sg")
    e(f"""s_waitcnt vmcnt(0)
    s_barrier
    s_cmp_lg_u32 s{S_W}, 0
    s_cbranch_scc1 {L}
    s_lshl_b32 s82, s{scnt}, 7
    v_mov_b32 v1, s82
    v_mov_b32 v2, 1
    s_mov_b64 exec, 1
    buffer_atomic_add v2, v1, s[{SRD_CNT}:{SRD_CNT+3}], 0 offen sc1
    s_mov_b64 exec, -1""")
    g.lab(L)

def wait_cnt(m, scnt, n, target, lo=None, hi=None, extra=None, extra_target=32):
    g = m.g; e = g.e
    L = m.lab("wc")
    e(f"s_cmp_lg_u32 s{S_W}, 0\ns_cbranch_scc1 {L}")
    setup = f"v_and_b32 v1, 63, v0\nv_add_u32 v2, s{scnt}, v1"
    if lo is not None:
        setup += f"\nv_max_i32 v2, {lo}, v2\nv_min_i32 v2, {hi}, v2"
    nl = n
    if extra is not None:
        setup += f"\nv_cmp_eq_u32 vcc, {n}, v1\nv_mov_b32 v1, s{extra}\nv_mov_b32 v163, {target}\nv_cndmask_b32 v2, v2, v1, vcc\nv_cndmask_b32 v163, v163, {extra_target}, vcc"
        nl = n + 1
    setup += "\nv_lshlrev_b32 v1, 7, v2"
    poll(m, SRD_CNT, setup, nl, target, vtarget=(163 if extra is not None else None))
    g.lab(L)
    e("s_barrier")

W_PITCH = 160
LDS_W = 0
LDS_RED = 97280
RED_SZ = 12 * 5 * 1024
LDS_TAB = LDS_RED + RED_SZ
LDS_TOTAL = 163840

def midmap(g):
    g.e("""s_and_b32 s20, s2, 7
    s_lshr_b32 s21, s2, 3
    s_lshl_b32 s20, s20, 2
    s_and_b32 s23, s21, 3
    s_add_u32 s20, s20, s23
    s_lshr_b32 s21, s21, 2""")

def efmap(g):
    R = MAPR; J = 32 // R
    lr = R.bit_length() - 1; lj = J.bit_length() - 1
    njg = 8 // J; lnjg = njg.bit_length() - 1
    g.e(f"""s_and_b32 s21, s2, 7
    s_lshr_b32 s23, s2, 3
    s_lshr_b32 s20, s21, {lnjg}
    s_lshl_b32 s20, s20, {lr}
    s_and_b32 s19, s23, {R-1}
    s_add_u32 s20, s20, s19
    s_and_b32 s21, s21, {njg-1}
    s_lshl_b32 s21, s21, {lj}
    s_lshr_b32 s23, s23, {lr}
    s_add_u32 s21, s21, s23""")

def lanes(g):
    g.e("""v_and_b32 v1, 63, v0
    v_lshlrev_b32 v2, 4, v1
    v_and_b32 v3, 15, v1
    v_lshrrev_b32 v4, 4, v1""")

def xsum_g(g, v, t):
    g.e(f"""v_mov_b32 v{t}, v{v}
    s_nop 1
    v_permlane16_swap_b32 v{t}, v{v}
    s_nop 1
    v_add_f32 v{v}, v{v}, v{t}
    v_mov_b32 v{t}, v{v}
    s_nop 1
    v_permlane32_swap_b32 v{t}, v{v}
    s_nop 1
    v_add_f32 v{v}, v{v}, v{t}""")

def ss_load(g, dst, srd, srow, tmp):
    g.e(f"""v_add_u32 v{tmp}, s{srow}, v3
    v_lshlrev_b32 v{tmp}, 7, v{tmp}
    v_lshl_add_u32 v{tmp}, v4, 5, v{tmp}
    v_cmp_eq_u32 vcc, 3, v4
    v_mov_b32 v{tmp+1}, 0x7fffff00
    s_nop 0
    v_cndmask_b32 v{tmp}, v{tmp}, v{tmp+1}, vcc
    buffer_load_dwordx4 v[{dst}:{dst+3}], v{tmp}, s[{srd}:{srd+3}], 0 offen sc1
    buffer_load_dwordx4 v[{dst+4}:{dst+7}], v{tmp}, s[{srd}:{srd+3}], 0 offen offset:16 sc1""")

def ss_reduce(g, a, t):
    for k in range(1, 8): g.e(f"v_add_f32 v{a}, v{a}, v{a+k}")
    xsum_g(g, a, t)

def wtile_dma_raw(g, srd, s_src, tmp, mask9=False):
    e = g.e
    e(f"s_lshl_b32 s40, s{S_W}, 9")
    e(f"s_lshl_b32 s41, s{S_W}, 13")
    for m_ in range(8):
        e(f"v_add_u32 v{tmp}, s40, v1")
        if m_: e(f"v_add_u32 v{tmp}, {64*m_}, v{tmp}")
        e(f"""v_mul_u32_u24 v{tmp+1}, 6554, v{tmp}
        v_lshrrev_b32 v{tmp+1}, 16, v{tmp+1}
        v_mul_u32_u24 v{tmp+2}, 10, v{tmp+1}
        v_sub_u32 v{tmp}, v{tmp}, v{tmp+2}
        v_mul_u32_u24 v{tmp+1}, 1152, v{tmp+1}
        v_lshl_add_u32 v{tmp+1}, v{tmp}, 4, v{tmp+1}
        s_add_u32 m0, s41, {LDS_W + m_*1024}""")
        if mask9:
            e(f"v_cmp_ne_u32 vcc, 9, v{tmp}\ns_nop 0\ns_mov_b64 exec, vcc")
        else:
            e("s_nop 0")
        e(f"buffer_load_dwordx4 v{tmp+1}, s[{srd}:{srd+3}], s{s_src} offen lds")
        if mask9: e("s_mov_b64 exec, -1")

def gemm_stage(g, XF, AF, ACC, vtr, nks=6):
    e = g.e
    def rd(i, p):
        for nt in range(5):
            a = AF + p*20 + nt*4
            e(f"ds_read_b64_tr_b16 v[{a}:{a+1}], v{vtr} offset:{i*32*W_PITCH + nt*32}")
            e(f"ds_read_b64_tr_b16 v[{a+2}:{a+3}], v{vtr} offset:{i*32*W_PITCH + nt*32 + 8*W_PITCH}")
    rd(0, 0)
    for i in range(nks):
        p = i & 1
        if i + 1 < nks:
            rd(i + 1, 1 - p)
            e("s_waitcnt lgkmcnt(10)")
        else:
            e("s_waitcnt lgkmcnt(0)")
        for nt in range(5):
            a = AF + p*20 + nt*4; c = ACC + nt*4
            src = f"v[{c}:{c+3}]" if i else "0"
            e(f"v_mfma_f32_16x16x32_bf16 v[{c}:{c+3}], v[{a}:{a+3}], v[{XF+4*i}:{XF+4*i+3}], {src}")

def tr_base(g, v, tmp, s_ks0):
    g.e(f"""v_lshrrev_b32 v{v}, 5, v1
    v_lshlrev_b32 v{v}, 4, v{v}
    v_bfe_u32 v{tmp}, v1, 4, 1
    v_lshl_add_u32 v{v}, v{tmp}, 2, v{v}
    v_bfe_u32 v{tmp}, v1, 2, 2
    v_add_u32 v{v}, v{v}, v{tmp}
    v_mul_u32_u24 v{v}, {W_PITCH}, v{v}
    v_and_b32 v{tmp}, 3, v1
    v_lshl_add_u32 v{v}, v{tmp}, 3, v{v}
    s_mul_i32 s31, s{s_ks0}, {32*W_PITCH}
    v_add_u32 v{v}, s31, v{v}""")

def img_dma(g, region, nbytes_per_ng):
    e = g.e
    N = nbytes_per_ng // 1024
    g.ws_srd(12, P_WS, region)
    e(f"""s_mul_i32 s40, s21, {nbytes_per_ng}
    s_lshl_b32 s41, s{S_W}, 10""")
    for m_ in range(8):
        if 12*m_ + 11 >= N:
            e(f"""s_add_u32 s42, s41, {12*m_*1024}
            s_cmp_ge_u32 s42, {N*1024}
            s_cselect_b32 s43, {12*1024}, 0
            s_sub_u32 s42, s42, s43""")
        else:
            e(f"s_add_u32 s42, s41, {12*m_*1024}")
        e(f"""s_mov_b32 m0, s42
        s_add_u32 s43, s40, s42
        buffer_load_dwordx4 v2, s[12:15], s43 offen lds""")

def next_w_dma(m, region, nbytes_per_ng):
    g = m.g; e = g.e
    L = m.lab("nw")
    N = nbytes_per_ng // 1024
    e(f"s_cmp_eq_u32 s{S_W}, 0\ns_cbranch_scc1 {L}")
    g.ws_srd(12, P_WS, region)
    e(f"""s_mul_i32 s40, s21, {nbytes_per_ng}
    s_sub_u32 s41, s{S_W}, 1
    s_lshl_b32 s41, s41, 10""")
    for m_ in range(9):
        if 11*m_ + 10 >= N:
            e(f"""s_add_u32 s42, s41, {11*m_*1024}
            s_cmp_ge_u32 s42, {N*1024}
            s_cselect_b32 s43, {11*1024}, 0
            s_sub_u32 s42, s42, s43""")
        else:
            e(f"s_add_u32 s42, s41, {11*m_*1024}")
        e(f"""s_mov_b32 m0, s42
        s_add_u32 s43, s40, s42
        buffer_load_dwordx4 v2, s[12:15], s43 offen lds""")
    g.lab(L)

def unit_off(g, vout, tmp):
    g.e(f"""v_and_b32 v{tmp}, 1, v4
    v_lshlrev_b32 v{vout}, 9, v{tmp}
    v_lshrrev_b32 v{tmp}, 1, v4
    v_lshl_add_u32 v{vout}, v{tmp}, 8, v{vout}
    v_lshl_add_u32 v{vout}, v3, 4, v{vout}""")

def swap_pair(g, a):
    g.e(f"s_nop 1\nv_permlane16_swap_b32 v{a}, v{a+2}\nv_permlane16_swap_b32 v{a+1}, v{a+3}\ns_nop 1")

def red_write(g, ACC, tmp):
    e = g.e
    e(f"s_mul_i32 s40, s{S_W}, 5120")
    e(f"s_add_u32 s40, s40, {LDS_RED}")
    e(f"v_add_u32 v{tmp}, s40, v2")
    e("s_nop 7")
    for nt in range(5):
        e(f"ds_write_b128 v{tmp}, v[{ACC+4*nt}:{ACC+4*nt+3}] offset:{nt*1024}")

def red_addr(g, v):
    g.e(f"""s_mul_i32 s32, s24, 5120
    s_lshl_b32 s33, s25, 11
    s_add_u32 s33, s32, s33
    s_add_u32 s33, s33, {LDS_RED}
    v_add_u32 v{v}, s33, v2""")

def red_read(g, dst, vaddr, nt_off):
    for k in range(3):
        g.e(f"ds_read_b128 v[{dst+4*k}:{dst+4*k+3}], v{vaddr} offset:{k*4*5120 + nt_off}")

def fm2_tile_off(g, vout, s_q0, tmp):
    g.e(f"""v_add_u32 v{tmp}, s{s_q0}, v4
    v_lshrrev_b32 v{vout}, 3, v{tmp}
    v_lshlrev_b32 v{vout}, 10, v{vout}
    v_and_b32 v{tmp+1}, 3, v{tmp}
    v_lshl_add_u32 v{vout}, v{tmp+1}, 8, v{vout}
    v_bfe_u32 v{tmp+1}, v{tmp}, 2, 1
    v_lshl_add_u32 v{vout}, v{tmp+1}, 3, v{vout}
    v_lshl_add_u32 v{vout}, v3, 4, v{vout}""")

def unpack4(g, src, dst):
    g.e(f"""v_lshlrev_b32 v{dst}, 16, v{src}
    v_and_b32 v{dst+1}, 0xffff0000, v{src}
    v_lshlrev_b32 v{dst+2}, 16, v{src+1}
    v_and_b32 v{dst+3}, 0xffff0000, v{src+1}""")

def gelu4(g, c, t, k):
    e = g.e
    for r in range(4): e(f"v_mul_f32 v{t+r}, v{c+r}, v{c+r}")
    for r in range(4): e(f"v_fma_f32 v{t+r}, v{t+r}, v{k+1}, v{k}")
    for r in range(4): e(f"v_mul_f32 v{t+r}, v{t+r}, v{c+r}")
    for r in range(4): e(f"v_exp_f32 v{t+r}, v{t+r}")
    for r in range(4): e(f"v_fma_f32 v{t+r}, v{t+r}, v{k+2}, v{k+2}")
    for r in range(4): e(f"v_rcp_f32 v{t+r}, v{t+r}")
    for r in range(4): e(f"v_mul_f32 v{t+r}, v{t+r}, v{c+r}")
    e(f"v_cvt_pk_bf16_f32 v{t}, v{t}, v{t+1}")
    e(f"v_cvt_pk_bf16_f32 v{t+1}, v{t+2}, v{t+3}")

def gelu4p(g, c, t, k):
    e = g.e
    for r in (0, 2): e(f"v_pk_mul_f32 v[{t+r}:{t+r+1}], v[{c+r}:{c+r+1}], v[{c+r}:{c+r+1}]")
    for r in (0, 2): e(f"v_pk_fma_f32 v[{t+r}:{t+r+1}], v[{t+r}:{t+r+1}], v[{k}:{k+1}], v[{k}:{k+1}] op_sel:[0,1,0] op_sel_hi:[1,1,0]")
    for r in (0, 2): e(f"v_pk_mul_f32 v[{t+r}:{t+r+1}], v[{t+r}:{t+r+1}], v[{c+r}:{c+r+1}]")
    for r in range(4): e(f"v_exp_f32 v{t+r}, v{t+r}")
    for r in (0, 2): e(f"v_pk_fma_f32 v[{t+r}:{t+r+1}], v[{t+r}:{t+r+1}], v[{k+2}:{k+3}], v[{k+2}:{k+3}] op_sel:[0,0,0] op_sel_hi:[1,0,0]")
    for r in range(4): e(f"v_rcp_f32 v{t+r}, v{t+r}")
    for r in (0, 2): e(f"v_pk_mul_f32 v[{t+r}:{t+r+1}], v[{t+r}:{t+r+1}], v[{c+r}:{c+r+1}]")
    e(f"v_cvt_pk_bf16_f32 v{t}, v{t}, v{t+1}")
    e(f"v_cvt_pk_bf16_f32 v{t+1}, v{t+2}, v{t+3}")

def mid_ids(g):
    midmap(g)
    g.e(f"""s_and_b32 s24, s{S_W}, 3
    s_lshr_b32 s25, s{S_W}, 2
    s_lshl_b32 s26, s20, 2
    s_add_u32 s26, s26, s24
    s_lshl_b32 s30, s26, 4""")


IMG_SZ = 576 * 160
IMGO_SZ = 608 * 160
LDS_KV = LDS_RED

def own_mask(g, name):
    L = name + "_om"
    g.e(f"""s_cmp_eq_u32 s25, 2
    s_cbranch_scc0 {L}
    s_mov_b64 exec, 0xffff""")
    g.lab(L)

def sum3(g, a):
    for r in range(4): g.e(f"v_add_f32 v{a+r}, v{a+r}, v{a+4+r}")
    for r in range(4): g.e(f"v_add_f32 v{a+r}, v{a+r}, v{a+8+r}")

def mean_extra_read(g, dst, tmp):
    g.e(f"""s_mul_i32 s32, s24, 5120
    s_add_u32 s32, s32, {LDS_RED + 4*1024 + 32*16}
    v_lshlrev_b32 v{tmp}, 4, v3
    v_add_u32 v{tmp}, s32, v{tmp}""")
    for k in range(3):
        g.e(f"ds_read_b64 v[{dst+2*k}:{dst+2*k+1}], v{tmp} offset:{k*4*5120}")

def mean_extra_sum(g, m1):
    g.e(f"""v_add_f32 v{m1}, v{m1}, v{m1+1}
    v_add_f32 v{m1+2}, v{m1+2}, v{m1+3}
    v_add_f32 v{m1+4}, v{m1+4}, v{m1+5}
    v_add_f32 v{m1}, v{m1}, v{m1+2}
    v_add_f32 v{m1}, v{m1}, v{m1+4}""")

def ss_store(g, v, srd, tmp):
    xsum_g(g, v, tmp)
    g.e(f"""s_mul_i32 s33, s21, 3
    s_add_u32 s33, s33, s25
    s_lshl_b32 s33, s33, 2
    v_add_u32 v{tmp}, s30, v3
    v_lshlrev_b32 v{tmp}, 7, v{tmp}
    v_add_u32 v{tmp}, s33, v{tmp}
    s_mov_b64 exec, 0xffff
    buffer_store_dword v{v}, v{tmp}, s[{srd}:{srd+3}], 0 offen sc1
    s_mov_b64 exec, -1""")

def tile_soff(g, s):
    g.e(f"""s_mul_i32 s{s}, s26, 72
    s_mul_i32 s33, s21, 9
    s_add_u32 s{s}, s{s}, s33
    s_lshl_b32 s33, s25, 2
    s_add_u32 s{s}, s{s}, s33
    s_lshl_b32 s{s}, s{s}, 8""")

LDS_SIG = 163776
def finish_signal(m, cnt_base, slot, extra=None):
    g = m.g; e = g.e
    L = m.lab("sg")
    e(f"""s_waitcnt vmcnt(0)
    s_barrier
    s_cmp_lg_u32 s{S_W}, 0
    s_cbranch_scc1 {L}
    s_add_u32 s82, s20, {cnt_base}
    s_lshl_b32 s82, s82, 7
    v_mov_b32 v110, s82
    v_mov_b32 v111, 1
    s_mov_b64 exec, 1
    buffer_atomic_add v111, v110, s[{SRD_CNT}:{SRD_CNT+3}], 0 offen sc1""")
    if extra is not None:
        e(f"""s_cmp_ge_u32 s2, 192
        s_cbranch_scc1 {L}
        s_and_b32 s82, s2, 7
        s_add_u32 s82, s82, 144
        s_lshl_b32 s82, s82, 7
        v_mov_b32 v110, s82
        buffer_atomic_add v111, v110, s[{SRD_CNT}:{SRD_CNT+3}], 0 offen sc1""")
    g.lab(L)
    e("s_mov_b64 exec, -1")

def wp_touch(m, part, vdst=162):
    g = m.g; e = g.e
    L = m.lab("wt")
    R = MAPR
    shr = 55296 // R
    nl = (shr + 127) // 128
    spw = 64 // nl
    nw = (12 + spw - 1) // spw
    e(f"s_cmp_ge_u32 s{S_W}, {nw}\ns_cbranch_scc1 {L}")
    efmap(g)
    g.ws_srd(8, P_WS, "WP")
    e(f"""v_and_b32 v120, 63, v0
    v_mul_u32_u24 v121, {65536 // nl + 1}, v120
    v_lshrrev_b32 v121, 16, v121
    v_mul_u32_u24 v122, {nl}, v121
    v_sub_u32 v122, v120, v122                   ; line
    s_mul_i32 s23, s{S_W}, {spw}
    v_add_u32 v121, s23, v121                  ; stream 0..11(+)
    v_mul_u32_u24 v121, {WP_WAVE}, v121
    v_lshl_add_u32 v121, v122, 7, v121
    s_mul_i32 s23, s21, {12*WP_WAVE}
    s_mul_i32 s19, s19, {shr}
    s_add_u32 s23, s23, s19
    s_add_u32 s23, s23, {part*55296}
    v_cmp_gt_u32 vcc, {spw*nl}, v120
    s_and_saveexec_b64 s[18:19], vcc
    buffer_load_dword v{vdst}, v121, s[8:11], s23 offen
    s_mov_b64 exec, -1""")
    g.lab(L)

CNT_IMG = 152
LDS_KB = LDS_RED
def phase_b(m, first=False, prefetch_next=True, wp_signal=False):
    g = m.g; e = g.e; name = m.lab("B")
    PQF, KA, D0, BFR, LFT, AF, ACC, C1R = 8, 56, 80, 96, 100, 104, 124, 144
    XR, MX = 148, 152
    VK0, VK1, VTR = 5, 153, 6
    KVR = 56
    lanes(g); mid_ids(g)
    if not first:
        e(f"s_mov_b32 s33, {CNT_IMG}")
        wait_cnt(m, 33, 8, 8)
        lanes(g)
    img_dma(g, "IMGO", IMGO_SZ)
    unit_off(g, 7, 110)
    e(f"""v_and_b32 v110, 1, v4
    v_lshlrev_b32 v111, 5, v110
    v_lshrrev_b32 v110, 1, v4
    v_lshl_add_u32 v111, v110, 4, v111
    v_add_u32 v110, s30, v3
    v_mul_u32_u24 v112, 1152, v110
    v_add_u32 v112, v112, v111
    s_mul_i32 s35, s21, 144
    s_lshl_b32 s33, s25, 6
    s_add_u32 s35, s35, s33""")
    g.srd_from(16, PTR["x"], 0, FMSZ)
    e(f"buffer_load_dwordx4 v[{XR}:{XR+3}], v112, s[16:19], s35 offen")
    e("""s_mov_b32 s27, 0
    s_mov_b32 s28, 0
    s_cmp_eq_u32 s25, 1
    s_cselect_b32 s27, 12, s27
    s_cselect_b32 s28, 7, s28
    s_cmp_eq_u32 s25, 2
    s_cselect_b32 s27, 22, s27
    s_cselect_b32 s28, 13, s28""")
    e(f"""v_mul_u32_u24 v{VK0}, 48, v3
    v_lshl_add_u32 v{VK0}, v4, 4, v{VK0}
    v_mov_b32 v110, {19*48}
    v_cmp_gt_u32 vcc, 3, v4
    s_mov_b64 s[36:37], vcc
    s_mul_i32 s38, s27, 960
    v_cndmask_b32 v{VK0}, v110, v{VK0}, vcc
    s_add_u32 s38, s38, {LDS_KB}
    v_add_u32 v{VK0}, s38, v{VK0}
    v_and_b32 v111, 3, v3
    v_lshrrev_b32 v112, 2, v3""")
    for gh in range(4):
        v = VK1 + gh
        e(f"""v_mov_b32 v{v}, 19
        v_add_u32 v113, 16, v111
        v_cmp_eq_u32 vcc, {gh}, v112
        s_mov_b64 s[40:41], vcc
        v_cmp_gt_u32 vcc, 2, v111
        s_and_b64 vcc, vcc, s[40:41]
        s_nop 1
        v_cndmask_b32 v{v}, v{v}, v113, vcc
        v_cmp_eq_u32 vcc, 2, v111
        s_nop 1
        v_cndmask_b32 v{v}, v{v}, 18, vcc
        v_mul_u32_u24 v{v}, 48, v{v}
        v_lshl_add_u32 v{v}, v4, 4, v{v}
        v_cndmask_b32 v{v}, v110, v{v}, s[36:37]
        v_add_u32 v{v}, s38, v{v}""")
    tr_base(g, VTR, 110, 28)
    e(f"""v_mov_b32 v{C1R}, 0
    v_mov_b32 v{C1R+1}, 0
    v_mov_b32 v{C1R+2}, {hx(1e-6)}
    v_mov_b32 v{C1R+3}, 0""")
    for r in range(4): e(f"v_mov_b32 v{LFT+r}, 0")
    for r in range(20): e(f"v_mov_b32 v{ACC+r}, 0")
    g.ws_srd(44, P_WS, "HC"); g.ws_srd(48, P_WS, "MEANH"); g.ws_srd(52, P_WS, "SSH")
    g.ws_srd(8, P_WS, "KVT"); g.ws_srd(16, P_WS, "PQP")
    e(f"""s_lshl_b32 s34, s26, 5
    s_add_u32 s34, s34, s27
    s_mul_i32 s34, s34, 768
    v_lshlrev_b32 v157, 4, v0
    v_lshlrev_b32 v158, 3, v0
    v_add_u32 v158, {LDS_KB}, v158""")
    if not first:
        e(f"s_mov_b32 s33, {CNT_G + 1}")
        e("v_mov_b32 v159, v1\nv_mov_b32 v160, v2")
        wait_cnt(m, 33, 1, 1)
        e("v_mov_b32 v1, v159\nv_mov_b32 v2, v160")
        stamp(m, "B:bar")
        rt_all(m, 2)
    for k in range(5):
        e(f"buffer_load_dwordx4 v[{KVR+4*k}:{KVR+4*k+3}], v157, s[8:11], 0 offen sc1")
        if k < 4: e(f"v_add_u32 v157, {768*16}, v157")
    e("s_barrier")
    for i in range(12):
        if i in (5, 10): e("s_add_u32 s34, s34, 3840")
        e(f"buffer_load_dwordx4 v[{PQF+4*i}:{PQF+4*i+3}], v2, s[16:19], s34 offen offset:{(i%5)*768} sc1")
    g.ws_srd(16, P_WS, "XST")
    e(f"v_add_u32 v110, s30, v3\nv_lshlrev_b32 v110, 2, v110\nbuffer_load_dword v{MX}, v110, s[16:19], 0 offen sc1")
    for k in range(5):
        e(f"s_waitcnt vmcnt({13 + 4 - k})")
        e(f"v_cvt_pk_bf16_f32 v{KVR+4*k}, v{KVR+4*k}, v{KVR+4*k+1}")
        e(f"v_cvt_pk_bf16_f32 v{KVR+4*k+1}, v{KVR+4*k+2}, v{KVR+4*k+3}")
        e(f"ds_write_b64 v158, v[{KVR+4*k}:{KVR+4*k+1}] offset:{k*768*8}")
    e("s_waitcnt lgkmcnt(0)\ns_barrier")
    stamp(m, "B:loaded")
    q = []
    def lds(tag, txt): e(txt); q.append(tag)
    def need(tag):
        idx = max(i for i, t in enumerate(q) if t == tag)
        n = len(q) - 1 - idx
        e(f"s_waitcnt lgkmcnt({min(n, 15)})")
        del q[:idx + 1 if n <= 15 else max(0, len(q) - 15)]
    def kread(hl):
        a = KA + 8*(hl % 3)
        lds(("k", hl), f"ds_read_b128 v[{a}:{a+3}], v{VK0} offset:{hl*960}")
        lds(("k", hl), f"ds_read_b128 v[{a+4}:{a+7}], v{VK1 + (hl & 3)} offset:{hl*960}")
    def wread(i):
        for nt in range(5):
            a = AF + nt*4
            lds(("w", i), f"ds_read_b64_tr_b16 v[{a}:{a+1}], v{VTR} offset:{i*32*W_PITCH + nt*32}")
            lds(("w", i), f"ds_read_b64_tr_b16 v[{a+2}:{a+3}], v{VTR} offset:{i*32*W_PITCH + nt*32 + 8*W_PITCH}")
    def wmfma(bf):
        for nt in range(5):
            a = AF + nt*4; c = ACC + nt*4
            e(f"v_mfma_f32_16x16x32_bf16 v[{c}:{c+3}], v[{a}:{a+3}], v[{bf}:{bf+3}], v[{c}:{c+3}]")
    def hm(hl):
        a = KA + 8*(hl % 3); dd = D0 + 8*(hl & 1); p = PQF + 4*hl
        need(("k", hl))
        e(f"s_waitcnt vmcnt({12 - hl})")
        e(f"v_mfma_f32_16x16x32_bf16 v[{dd}:{dd+3}], v[{a}:{a+3}], v[{p}:{p+3}], 0")
        e(f"v_mfma_f32_16x16x32_bf16 v[{dd+4}:{dd+7}], v[{a+4}:{a+7}], v[{p}:{p+3}], v[{C1R}:{C1R+3}]")
    def post(hl):
        dd = D0 + 8*(hl & 1); slot = hl & 1
        e(f"v_rcp_f32 v{dd+6}, v{dd+6}")
        e("s_nop 0")
        for r in range(4): e(f"v_mul_f32 v{dd+r}, v{dd+r}, v{dd+6}")
        e(f"v_mul_f32 v{dd+4}, v{dd+4}, v{dd+6}")
        e(f"v_mul_f32 v{dd+5}, v{dd+5}, v{dd+6}")
        e(f"v_cvt_pk_bf16_f32 v{BFR+2*slot}, v{dd}, v{dd+1}")
        e(f"v_cvt_pk_bf16_f32 v{BFR+2*slot+1}, v{dd+2}, v{dd+3}")
        e(f"v_cvt_pk_bf16_f32 v{dd+4}, v{dd+4}, v{dd+5}")
        e(f"v_or_b32 v{LFT + (hl >> 2)}, v{LFT + (hl >> 2)}, v{dd+4}")
    def pair(i, nh):
        h0, h1 = 2*i, 2*i + 1
        hm(h0)
        if h0 + 3 < nh: pass
        hm(h1)
        if h0 + 3 < nh + 1 and h0 + 3 <= nh - 1 + 0: pass
        if h0 + 2 < nh: kread(h0 + 2)
        e("s_nop 3")
        post(h0)
        if h0 + 3 < nh: kread(h0 + 3)
        e("s_nop 1")
        post(h1)
        need(("w", i))
        e("s_nop 0")
        wmfma(BFR)
    def run(nh, tag):
        kread(0); kread(1); wread(0)
        for i in range(nh // 2):
            pair(i, nh)
            wread(i + 1)
        need(("w", nh // 2))
        wmfma(LFT)
    e(f"s_cmp_lg_u32 s25, 0\ns_cbranch_scc1 {name}_r10")
    run(12, "a")
    e(f"s_branch {name}_rj")
    g.lab(f"{name}_r10")
    q.clear()
    run(10, "b")
    g.lab(f"{name}_rj")
    q.clear()
    e("s_waitcnt vmcnt(0) lgkmcnt(0)")
    e("s_barrier")
    stamp(m, "B:gemm")
    if prefetch_next: img_dma(g, "IMG1", IMG_SZ)
    red_write(g, ACC, 5)
    e("s_waitcnt lgkmcnt(0)\ns_barrier")
    stamp(m, "B:red")
    red_addr(g, 5)
    mean_extra_read(g, ACC, 110)
    red_read(g, AF, 5, 0)
    red_read(g, 56, 5, 1024)
    swap_pair(g, XR)
    unpack4(g, XR, 72); unpack4(g, XR + 2, 76)
    e("s_waitcnt lgkmcnt(6)")
    mean_extra_sum(g, ACC)
    e(f"v_add_f32 v{ACC}, v{ACC}, v{MX}            ; mean_h")
    e("s_waitcnt lgkmcnt(0)")
    sum3(g, AF); sum3(g, 56)
    e(f"v_mov_b32 v{ACC+6}, 0")
    for (a_, x) in ((AF, 72), (56, 76)):
        for r in range(4): e(f"v_add_f32 v{a_+r}, v{a_+r}, v{x+r}")
        for r in range(4): e(f"v_sub_f32 v{a_+r}, v{a_+r}, v{ACC}")
    e(f"""s_cmp_eq_u32 s25, 2
    s_cbranch_scc1 {name}_q2""")
    for a_ in (AF, 56):
        for r in range(4): e(f"v_fmac_f32 v{ACC+6}, v{a_+r}, v{a_+r}")
    e(f"s_branch {name}_q3")
    g.lab(f"{name}_q2")
    e("s_mov_b64 exec, 0xffffffff")
    for r in range(4): e(f"v_fmac_f32 v{ACC+6}, v{AF+r}, v{AF+r}")
    e("s_mov_b64 exec, -1")
    g.lab(f"{name}_q3")
    e(f"""v_cvt_pk_bf16_f32 v80, v{AF}, v{AF+1}
    v_cvt_pk_bf16_f32 v81, v{AF+2}, v{AF+3}
    v_cvt_pk_bf16_f32 v82, v56, v57
    v_cvt_pk_bf16_f32 v83, v58, v59""")
    swap_pair(g, 80)
    tile_soff(g, 36)
    own_mask(g, name)
    stamp(m, "B:st")
    e("buffer_store_dwordx4 v[80:83], v7, s[44:47], s36 offen sc1")
    e("s_mov_b64 exec, -1")
    ss_store(g, ACC + 6, 52, 110)
    L = name + "_nm"
    e(f"""s_or_b32 s33, s21, s25
    s_cmp_lg_u32 s33, 0
    s_cbranch_scc1 {L}
    v_add_u32 v110, s30, v3
    v_lshlrev_b32 v110, 2, v110
    s_mov_b64 exec, 0xffff
    buffer_store_dword v{ACC}, v110, s[48:51], 0 offen sc1
    s_mov_b64 exec, -1""")
    g.lab(L)
    n = 0
    stamp(m, "B:st2")
    finish_signal(m, CNT_B, 0, extra=(1 if wp_signal else None))
    stamp(m, "B:sig")
    rt_all(m, 3)

def phase_c(m, first=False, prefetch_next=True):
    g = m.g; e = g.e; name = m.lab("C")
    XF, AF, ACC, SS, K = 8, 32, 72, 92, 100
    lanes(g); mid_ids(g)
    if first: img_dma(g, "IMG1", IMG_SZ)
    else:
        e(f"s_add_u32 s33, s20, {CNT_B}")
        e("s_waitcnt vmcnt(0)")
        wait_cnt(m, 33, 1, 8)
        lanes(g)
    stamp(m, "C:go")
    e(f"""s_mul_i32 s27, s26, 18
    s_mul_i32 s28, s25, 6
    s_add_u32 s27, s27, s28
    s_lshl_b32 s27, s27, 10""")
    g.ws_srd(8, P_WS, "HC")
    for i in range(6):
        if i == 4: e("s_add_u32 s27, s27, 4096")
        e(f"buffer_load_dwordx4 v[{XF+4*i}:{XF+4*i+3}], v2, s[8:11], s27 offen offset:{(i%4)*1024} sc1")
    g.ws_srd(16, P_WS, "SSH")
    ss_load(g, SS, 16, 30, 5)
    g.ws_srd(44, P_WS, "HH")
    tr_base(g, 5, 6, 28)
    e("s_waitcnt vmcnt(2)")
    stamp(m, "C:loaded")
    gemm_stage(g, XF, AF, ACC, 5)
    e("s_waitcnt vmcnt(0)")
    ss_reduce(g, SS, 6)
    e(f"""v_mov_b32 v{SS+1}, {hx(1e-5)}
    v_fmac_f32 v{SS+1}, {hx(1.0/576)}, v{SS}
    v_rsq_f32 v{SS+2}, v{SS+1}
    v_mul_f32 v{SS+3}, {hx(1.0/576)}, v{SS}
    v_mul_f32 v{SS+3}, v{SS+3}, v{SS+2}
    v_mul_f32 v{SS+3}, v{SS+3}, v{SS+2}
    v_add_f32 v{SS+3}, {hx(1e-5)}, v{SS+3}
    v_mul_f32 v{SS+4}, v{SS+1}, v{SS+3}
    v_rsq_f32 v{SS+5}, v{SS+4}
    s_nop 0
    v_mul_f32 v{K+2}, v{SS+4}, v{SS+5}
    v_mul_f32 v{K}, {hx(-C1)}, v{SS+5}
    v_mul_f32 v{SS+6}, v{SS+5}, v{SS+5}
    v_mul_f32 v{SS+6}, v{SS+6}, v{SS+5}
    v_mul_f32 v{K+1}, {hx(-C2)}, v{SS+6}""")
    red_write(g, ACC, 5)
    e("s_waitcnt lgkmcnt(0)\ns_barrier")
    stamp(m, "C:red")
    if prefetch_next: img_dma(g, "IMG2", IMG_SZ)
    red_addr(g, 5)
    red_read(g, AF, 5, 0)
    red_read(g, AF + 12, 5, 1024)
    unit_off(g, 7, 6)
    tile_soff(g, 36)
    e("s_waitcnt lgkmcnt(3)")
    sum3(g, AF)
    gelu4(g, AF, 104, K)
    e("s_waitcnt lgkmcnt(0)")
    sum3(g, AF + 12)
    gelu4(g, AF + 12, 108, K)
    e("v_mov_b32 v106, v108\nv_mov_b32 v107, v109")
    swap_pair(g, 104)
    own_mask(g, name)
    e("buffer_store_dwordx4 v[104:107], v7, s[44:47], s36 offen sc1")
    e("s_mov_b64 exec, -1")
    n = 0
    finish_signal(m, CNT_C, 1)

    stamp(m, "C:sig")
    rt_all(m, 4)

def phase_d(m, check_wp=False):
    g = m.g; e = g.e; name = m.lab("D")
    XF, AF, ACC, SS, HCR, MH = 8, 32, 72, 92, 100, 104
    lanes(g); mid_ids(g)
    g.ws_srd(16, P_WS, "SSH")
    ss_load(g, SS, 16, 30, 110)
    unit_off(g, 7, 110)
    tile_soff(g, 36)
    g.ws_srd(16, P_WS, "HC")
    e(f"buffer_load_dwordx4 v[{HCR}:{HCR+3}], v7, s[16:19], s36 offen sc1")
    g.ws_srd(16, P_WS, "MEANH")
    e(f"""v_add_u32 v110, s30, v3
    v_lshlrev_b32 v110, 2, v110
    buffer_load_dword v{MH}, v110, s[16:19], 0 offen sc1""")
    e(f"""s_mov_b32 s31, -1
    s_mov_b32 s32, 1
    s_cmp_eq_u32 s25, 1
    s_cselect_b32 s31, 1, s31
    s_cselect_b32 s32, -2, s32
    s_cmp_eq_u32 s25, 2
    s_cselect_b32 s31, -2, s31
    s_cselect_b32 s32, 2, s32""")
    for (v, sd) in ((111, 31), (112, 32)):
        e(f"""v_add_u32 v113, s30, v3
        v_add_u32 v113, s{sd}, v113
        v_lshrrev_b32 v{v}, 4, v113
        v_mul_u32_u24 v{v}, 18432, v{v}
        v_and_b32 v114, 15, v113
        v_lshl_add_u32 v{v}, v114, 4, v{v}
        v_lshl_add_u32 v{v}, v4, 8, v{v}
        v_cmp_gt_u32 vcc, {S}, v113
        v_mov_b32 v114, 0x7fff0000
        s_nop 0
        v_cndmask_b32 v{v}, v114, v{v}, vcc""")
    e("""v_cmp_gt_u32 vcc, 2, v4
    s_nop 1
    v_cndmask_b32 v113, v112, v111, vcc""")
    e(f"s_add_u32 s33, s20, {CNT_C - 1}")
    e("s_waitcnt vmcnt(0)")
    if check_wp:
        R = MAPR; J = 32 // R; lr = R.bit_length() - 1; lj = J.bit_length() - 1; njg = 8 // J
        e(f"""s_and_b32 s34, s2, {njg-1}
        s_lshl_b32 s34, s34, {lj}
        s_lshr_b32 s35, s2, {3+lr}
        s_add_u32 s34, s34, s35
        s_add_u32 s34, s34, 144""")
        wait_cnt(m, 33, 3, 8, lo=CNT_C, hi=CNT_C + 31, extra=34)
    else:
        wait_cnt(m, 33, 3, 8, lo=CNT_C, hi=CNT_C + 31)
    lanes(g)
    stamp(m, "D:go")
    g.ws_srd(8, P_WS, "HH")
    e("s_mul_i32 s27, s25, 6144\ns_add_u32 s28, s27, 4096")
    def xl(i, v):
        so = "s27" if i < 4 else "s28"
        e(f"buffer_load_dwordx4 v[{XF+4*i}:{XF+4*i+3}], v{v}, s[8:11], {so} offen offset:{(i%4)*1024} sc1")
    e(f"s_cmp_eq_u32 s25, 1\ns_cbranch_scc1 {name}_x1\ns_cmp_eq_u32 s25, 2\ns_cbranch_scc1 {name}_x2")
    for i, v in enumerate((111, 111, 111, 111, 113, 112)): xl(i, v)
    e(f"s_branch {name}_xd")
    g.lab(f"{name}_x1")
    for i, v in enumerate((111, 111, 111, 112, 112, 112)): xl(i, v)
    e(f"s_branch {name}_xd")
    g.lab(f"{name}_x2")
    for i, v in enumerate((111, 113, 112, 112, 112, 112)): xl(i, v)
    g.lab(f"{name}_xd")
    g.ws_srd(44, P_WS, "X1C"); g.ws_srd(48, P_WS, "BASE"); g.ws_srd(52, P_WS, "SS1")
    e("s_mul_i32 s28, s25, 6")
    tr_base(g, 5, 110, 28)
    ss_reduce(g, SS, 110)
    e(f"""v_mov_b32 v{SS+1}, {hx(1e-5)}
    v_fmac_f32 v{SS+1}, {hx(1.0/576)}, v{SS}
    v_rsq_f32 v{SS+2}, v{SS+1}""")
    swap_pair(g, HCR)
    unpack4(g, HCR, 112); unpack4(g, HCR + 2, 116)
    e("s_waitcnt vmcnt(0)")
    stamp(m, "D:loaded")
    gemm_stage(g, XF, AF, ACC, 5)
    if check_wp:
        e("s_mov_b32 s38, s20\ns_mov_b32 s39, s21")
        wp_touch(m, 0)
        e("s_mov_b32 s20, s38\ns_mov_b32 s21, s39")
    red_write(g, ACC, 5)
    e("s_waitcnt lgkmcnt(0)\ns_barrier")
    stamp(m, "D:red")
    red_addr(g, 5)
    mean_extra_read(g, ACC, 110)
    red_read(g, AF, 5, 0)
    red_read(g, AF + 12, 5, 1024)
    e("s_waitcnt lgkmcnt(6)")
    m1 = ACC
    mean_extra_sum(g, m1)
    e(f"v_mov_b32 v{m1+6}, 0")
    e("s_waitcnt lgkmcnt(0)")
    for (a, h) in ((AF, 112), (AF + 12, 116)):
        sum3(g, a)
        for r in range(4): e(f"v_fmac_f32 v{a+r}, v{h+r}, v{SS+2}")
        for r in range(4): e(f"v_add_f32 v{h+r}, v{h+r}, v{MH}")
        for r in range(4): e(f"v_add_f32 v{h+r}, v{h+r}, v{a+r}")
        for r in range(4): e(f"v_sub_f32 v{a+r}, v{a+r}, v{m1}")
    e(f"s_cmp_eq_u32 s25, 2\ns_cbranch_scc1 {name}_q2")
    for a in (AF, AF + 12):
        for r in range(4): e(f"v_fmac_f32 v{m1+6}, v{a+r}, v{a+r}")
    e(f"s_branch {name}_q3")
    g.lab(f"{name}_q2")
    e("s_mov_b64 exec, 0xffffffff")
    for r in range(4): e(f"v_fmac_f32 v{m1+6}, v{AF+r}, v{AF+r}")
    e("s_mov_b64 exec, -1")
    g.lab(f"{name}_q3")
    e(f"""v_cvt_pk_bf16_f32 v80, v{AF}, v{AF+1}
    v_cvt_pk_bf16_f32 v81, v{AF+2}, v{AF+3}
    v_cvt_pk_bf16_f32 v82, v{AF+12}, v{AF+13}
    v_cvt_pk_bf16_f32 v83, v{AF+14}, v{AF+15}
    v_cvt_pk_bf16_f32 v84, v112, v113
    v_cvt_pk_bf16_f32 v85, v114, v115
    v_cvt_pk_bf16_f32 v86, v116, v117
    v_cvt_pk_bf16_f32 v87, v118, v119""")
    swap_pair(g, 80); swap_pair(g, 84)
    own_mask(g, name)
    e("buffer_store_dwordx4 v[80:83], v7, s[44:47], s36 offen sc1")
    e("buffer_store_dwordx4 v[84:87], v7, s[48:51], s36 offen sc1")
    e("s_mov_b64 exec, -1")
    ss_store(g, m1 + 6, 52, 110)
    finish_signal(m, CNT_D, 2)
    stamp(m, "D:sig")
    rt_all(m, 5)

LDS_X, LDS_H, LDS_FLAG = 0, 73728, 147456
RINGK = 3
def phase_ef(m):
    g = m.g; e = g.e; name = m.lab("E")
    NR = RINGK * 3
    ACC, BF, CONST, RING = 36, 20, 8, 84
    lanes(g); efmap(g)
    e(f"""s_mul_i32 s31, s21, 12
    s_add_u32 s31, s31, s{S_W}
    s_mul_i32 s31, s31, {WP_WAVE}""")
    g.ws_srd(12, P_WS, "WP")
    for sl in range(RINGK):
        for i in range(3):
            r = RING + (sl*3+i)*4
            e(f"buffer_load_dwordx4 v[{r}:{r+3}], v2, s[12:15], s31 offen offset:{i*1024}")
        e("s_add_u32 s31, s31, 3072")
    e(f"s_add_u32 s33, s20, {CNT_D}")
    wait_cnt(m, 33, 1, 8)
    lanes(g)
    stamp(m, "E:go")
    e(f"""s_cmp_lg_u32 s{S_W}, 4
    s_cbranch_scc1 {name}_noz
    v_lshlrev_b32 v5, 2, v1
    v_add_u32 v5, {LDS_FLAG + 1024}, v5
    v_mov_b32 v6, 0
    ds_write_b32 v5, v6""")
    g.lab(f"{name}_noz")

    e(f"""s_mul_i32 s28, s20, 73728
    s_mul_i32 s29, s{S_W}, 6144
    s_add_u32 s28, s28, s29
    s_mov_b32 m0, s29""")
    g.ws_srd(8, P_WS, "X1C")
    for i in range(6):
        if i == 4:
            e("s_add_u32 m0, s29, 4096\ns_add_u32 s28, s28, 4096\ns_nop 0")
        e(f"buffer_load_dwordx4 v2, s[8:11], s28 offen offset:{(i%4)*1024} sc1 lds")
    if WPT2:
        wp_touch(m, 1)
        efmap(g)
    g.ws_srd(16, P_WS, "SS1")
    e(f"""s_cmp_ge_u32 s{S_W}, 4
    s_cbranch_scc1 {name}_noss
    s_lshl_b32 s30, s20, 6
    s_lshl_b32 s33, s{S_W}, 4
    s_add_u32 s30, s30, s33""")
    ss_load(g, ACC, 16, 30, 5)
    e("s_waitcnt vmcnt(0)")
    ss_reduce(g, ACC, ACC + 8)
    a = ACC; c = CONST
    e(f"""v_mov_b32 v{a+1}, {hx(1e-5)}
    v_fmac_f32 v{a+1}, {hx(1.0/576)}, v{a}
    v_rsq_f32 v{a+2}, v{a+1}
    s_nop 0
    v_mul_f32 v{c+2}, v{a+1}, v{a+2}
    v_mul_f32 v{c}, {hx(-C1)}, v{a+2}
    v_mul_f32 v{a+3}, v{a+2}, v{a+2}
    v_mul_f32 v{a+3}, v{a+3}, v{a+2}
    v_mul_f32 v{c+1}, {hx(-C2)}, v{a+3}
    s_lshl_b32 s33, s{S_W}, 8
    v_lshlrev_b32 v5, 4, v3
    v_add_u32 v5, s33, v5
    v_add_u32 v5, {LDS_FLAG}, v5
    ds_write_b96 v5, v[{CONST}:{CONST+2}]""")
    g.lab(f"{name}_noss")
    g.ws_srd(24, P_WS, "PART")
    e(f"""s_mul_i32 s32, s{S_W}, 3
    s_waitcnt vmcnt(0) lgkmcnt(0)
    s_barrier""")
    stamp(m, "E:loaded")
    e(f"v_lshlrev_b32 v5, 4, v3\nv_add_u32 v5, {LDS_FLAG}, v5")
    for st in range(4):
        e(f"ds_read_b96 v[{BF+4*st}:{BF+4*st+2}], v5 offset:{st*256}")
    for i in range(48): e(f"v_mov_b32 v{ACC+i}, 0")
    e("s_waitcnt lgkmcnt(0)")
    for st in range(4):
        for k in range(3): e(f"v_mov_b32 v{(124+4*st if PKG else CONST+3*st)+k}, v{BF+4*st+k}")
    e(f"s_mov_b32 s34, 0\ns_mov_b32 s35, 0\nv_mov_b32 v7, v2\ns_setprio {PRIO[0]}")
    def body(last):
        for st in range(4):
            e(f"ds_read_b128 v[{BF+4*st}:{BF+4*st+3}], v7 offset:{st*18432}")
        for kk in range(6):
            sl = kk % RINGK
            e(f"s_waitcnt vmcnt({NR-3 if not last else min(NR-3, 3*(5-kk))})")
            for st in range(4):
                b = BF + 4*st
                e("s_waitcnt lgkmcnt(3)" if kk < 5 else f"s_waitcnt lgkmcnt({3-st})")
                for i in range(3):
                    a_ = RING + (sl*3+i)*4
                    c_ = ACC + (i*4+st)*4
                    e(f"v_mfma_f32_16x16x32_bf16 v[{c_}:{c_+3}], v[{a_}:{a_+3}], v[{b}:{b+3}], v[{c_}:{c_+3}]")
                if kk < 5:
                    e(f"ds_read_b128 v[{b}:{b+3}], v7 offset:{st*18432 + (kk+1)*1024}")
            if not (last and kk >= 6 - RINGK):
                for i in range(3):
                    r = RING + (sl*3+i)*4
                    e(f"buffer_load_dwordx4 v[{r}:{r+3}], v2, s[12:15], s31 offen offset:{i*1024}")
                e("s_add_u32 s31, s31, 3072")
    g.lab(f"{name}_loop")
    body(False)
    e(f"""v_add_u32 v7, 6144, v7
    s_add_u32 s35, s35, 1
    s_cmp_eq_u32 s34, 0
    s_cbranch_scc0 {name}_p1next
    s_cmp_lt_u32 s35, 3
    s_cbranch_scc1 {name}_loop
    s_setprio {PRIO[1]}
    s_nop 7""")
    stamp(m, "E:g1")
    e(f"""v_lshrrev_b32 v4, 5, v1
    s_mul_i32 s36, s{S_W}, 6
    v_add_u32 v4, s36, v4
    v_lshlrev_b32 v4, 8, v4
    v_lshl_add_u32 v4, v3, 4, v4
    v_bfe_u32 v5, v1, 4, 1
    v_lshl_add_u32 v4, v5, 3, v4
    v_add_u32 v4, {LDS_H}, v4""")
    for i in range(3):
        for st in range(4):
            c_ = ACC + (i*4+st)*4; k = CONST + 3*st
            t = BF + ((i*4+st) % 4) * 4
            if PKG: gelu4p(g, c_, t, 124 + 4*st)
            else: gelu4(g, c_, t, k)
            e(f"ds_write_b64 v4, v[{t}:{t+1}] offset:{st*18432 + i*512}")
    for i in range(48): e(f"v_mov_b32 v{ACC+i}, 0")
    e(f"""s_waitcnt lgkmcnt(0)
    s_lshr_b32 s36, s{S_W}, 2
    s_lshl_b32 s36, s36, 2
    s_add_u32 s36, s36, {LDS_FLAG + 1024}
    v_mov_b32 v4, s36
    v_mov_b32 v5, 1
    s_mov_b64 exec, 1
    ds_add_u32 v4, v5
    s_mov_b64 exec, -1
    s_setprio {PRIO[2]}
    s_mov_b32 s34, 1
    s_mov_b32 s35, 0
    v_add_u32 v7, {LDS_H}, v2""")
    stamp(m, "E:gelu")
    g.lab(f"{name}_p1next")
    L = f"{name}_wf"
    e(f"""s_lshl_b32 s36, s35, 2
    s_add_u32 s36, s36, {LDS_FLAG + 1024}
    v_mov_b32 v4, s36""")
    g.lab(L)
    e(f"""ds_read_b32 v5, v4
    s_waitcnt lgkmcnt(0)
    v_readfirstlane_b32 s36, v5
    s_cmp_ge_u32 s36, 4
    s_cbranch_scc1 {L}_ok
    s_sleep 1
    s_branch {L}""")
    g.lab(L + "_ok")
    e(f"s_cmp_lt_u32 s35, 2\ns_cbranch_scc1 {name}_loop")
    body(True)
    e("s_nop 7")
    stamp(m, "E:g2")
    e(f"""s_lshl_b32 s36, s21, 5
    s_add_u32 s36, s36, s20
    s_mul_i32 s36, s36, 72
    s_mul_i32 s33, s{S_W}, 6
    s_add_u32 s36, s36, s33
    s_lshl_b32 s36, s36, 10""")
    for i in range(3):
        for stp in range(2):
            c0 = ACC + (i*4+2*stp)*4; c1 = c0 + 4
            e(f"v_cvt_pk_bf16_f32 v{c0}, v{c0}, v{c0+1}")
            e(f"v_cvt_pk_bf16_f32 v{c0+1}, v{c0+2}, v{c0+3}")
            e(f"v_cvt_pk_bf16_f32 v{c0+2}, v{c1}, v{c1+1}")
            e(f"v_cvt_pk_bf16_f32 v{c0+3}, v{c1+2}, v{c1+3}")
            k = i*2 + stp
            if k == 4: e("s_add_u32 s36, s36, 4096")
            e(f"buffer_store_dwordx4 v[{c0}:{c0+3}], v2, s[24:27], s36 offen offset:{(k%4)*1024} sc1")
    finish_signal(m, CNT_E, 3)
    stamp(m, "E:sig")
    rt_all(m, 6)

def phase_g(m):
    g = m.g; e = g.e; name = m.lab("G")
    lanes(g); efmap(g)
    e(f"""s_mul_i32 s24, s21, 9
    s_add_u32 s24, s24, s{S_W}
    s_lshr_b32 s25, s24, 1               ; t
    s_and_b32 s26, s24, 1                ; stp
    s_lshl_b32 s27, s20, 2
    s_lshl_b32 s28, s26, 1
    s_add_u32 s27, s27, s28
    s_mul_i32 s28, s27, 72
    s_lshl_b32 s29, s25, 1
    s_add_u32 s28, s28, s29
    s_lshl_b32 s28, s28, 8
    v_lshrrev_b32 v5, 5, v1
    v_lshlrev_b32 v5, 8, v5
    v_lshl_add_u32 v5, v3, 4, v5
    v_bfe_u32 v6, v1, 4, 1
    v_lshl_add_u32 v5, v6, 3, v5""")
    g.ws_srd(12, P_WS, "BASE")
    e(f"""s_cmp_ge_u32 s{S_W}, 9
    s_cbranch_scc1 {name}_w
    buffer_load_dwordx2 v[8:9], v5, s[12:15], s28 offen sc1
    s_add_u32 s28, s28, 18432
    buffer_load_dwordx2 v[10:11], v5, s[12:15], s28 offen sc1""")
    g.lab(f"{name}_w")
    e(f"s_add_u32 s33, s20, {CNT_E}")
    e("s_waitcnt vmcnt(0)")
    wait_cnt(m, 33, 1, 8)
    lanes(g)
    stamp(m, "G:go")
    e(f"s_cmp_ge_u32 s{S_W}, 9\ns_cbranch_scc1 {name}_end")
    g.ws_srd(8, P_WS, "PART"); g.srd_from(16, PTR["out"], 0, FMSZ)
    e(f"""s_mul_i32 s30, s20, 72
    s_add_u32 s30, s30, s24
    s_lshl_b32 s30, s30, 10""")
    for j in range(8):
        e(f"buffer_load_dwordx4 v[{12+4*j}:{15+4*j}], v2, s[8:11], s30 offen sc1")
        if j < 7: e(f"s_add_u32 s30, s30, {32*72*1024}")
    e("""s_lshl_b32 s27, s27, 4
    v_add_u32 v6, s27, v3
    v_mul_u32_u24 v6, 1152, v6
    s_lshl_b32 s25, s25, 5
    v_lshl_add_u32 v6, v4, 3, v6
    v_add_u32 v6, s25, v6
    v_add_u32 v7, 18432, v6""")
    for d in range(4):
        e(f"v_lshlrev_b32 v{48+2*d}, 16, v{8+d}")
        e(f"v_and_b32 v{49+2*d}, 0xffff0000, v{8+d}")
    for j in range(8):
        e(f"s_waitcnt vmcnt({7-j})")
        for d in range(4):
            r = 12 + 4*j + d
            e(f"v_lshlrev_b32 v56, 16, v{r}")
            e(f"v_and_b32 v57, 0xffff0000, v{r}")
            e(f"v_add_f32 v{48+2*d}, v{48+2*d}, v56")
            e(f"v_add_f32 v{49+2*d}, v{49+2*d}, v57")
    for d in range(4): e(f"v_cvt_pk_bf16_f32 v{8+d}, v{48+2*d}, v{49+2*d}")
    e("buffer_store_dwordx2 v[8:9], v6, s[16:19], 0 offen")
    e("buffer_store_dwordx2 v[10:11], v7, s[16:19], 0 offen")
    g.lab(f"{name}_end")
    stamp(m, "G:end")
    rt_all(m, 7)
```

```python
from gl import *
import mega2 as mega
from mega2 import *
from scaff2 import krow_code

UNIT = 16384 + 2*9216
A_TAB = 4 * UNIT
A_STAT = A_TAB
A_CS2 = A_TAB + 2048
A_NTAB = A_CS2 + 1280
A_PK = 143360
A_EX = 0
A_STG = 73728
CNT_A = CNT_G
CNT_WP = 144

def swap23(g, vin, vout, t):
    g.e(f"""v_and_b32 v{vout}, 0x13, v{vin}
    v_and_b32 v{t}, 4, v{vin}
    v_lshl_or_b32 v{vout}, v{t}, 1, v{vout}
    v_and_b32 v{t}, 8, v{vin}
    v_lshrrev_b32 v{t}, 1, v{t}
    v_or_b32 v{vout}, v{vout}, v{t}""")

def trbase288(g, v, t):
    g.e(f"""v_lshrrev_b32 v{v}, 5, v1
    v_lshlrev_b32 v{v}, 4, v{v}
    v_bfe_u32 v{t}, v1, 4, 1
    v_lshl_add_u32 v{v}, v{t}, 2, v{v}
    v_bfe_u32 v{t}, v1, 2, 2
    v_add_u32 v{v}, v{v}, v{t}
    v_mul_u32_u24 v{v}, 288, v{v}
    v_and_b32 v{t}, 3, v1
    v_lshl_add_u32 v{v}, v{t}, 3, v{v}""")

def xfrag_base(g, v, t):
    g.e(f"""v_bfe_u32 v{t}, v3, 1, 3
    v_xor_b32 v{v}, v4, v{t}
    v_lshlrev_b32 v{v}, 4, v{v}
    v_lshl_add_u32 v{v}, v3, 7, v{v}
    v_or_b32 v{v+1}, 4, v4
    v_xor_b32 v{v+1}, v{v+1}, v{t}
    v_lshlrev_b32 v{v+1}, 4, v{v+1}
    v_lshl_add_u32 v{v+1}, v3, 7, v{v+1}""")

LOG2E = 1.4426950408889634
def phi4(g, c, T1, out):
    e = g.e
    for r in range(4): e(f"v_mul_f32 v{T1+r}, {hx(LOG2E)}, v{c+r}")
    for r in range(4): e(f"v_min_f32 v{T1+r}, 0, v{T1+r}")
    for r in range(4): e(f"v_exp_f32 v{T1+r}, v{T1+r}")
    for r in range(4): e(f"v_max_f32 v{out+r}, 0, v{c+r}")
    for r in range(4): e(f"v_add_f32 v{out+r}, {hx(1e-6)}, v{out+r}")
    for r in range(4): e(f"v_add_f32 v{out+r}, v{out+r}, v{T1+r}")

def stat_fin(g, a, b):
    g.e(f"""v_add_f32 v{a}, v{a}, v{b}
    v_add_f32 v{a+1}, v{a+1}, v{b+1}
    v_mul_f32 v{a}, {hx(1.0/576)}, v{a}
    v_mul_f32 v{a+1}, {hx(1.0/576)}, v{a+1}
    v_fma_f32 v{a+1}, -v{a}, v{a}, v{a+1}
    v_max_f32 v{a+1}, 0, v{a+1}
    v_add_f32 v{a+1}, {hx(1e-5)}, v{a+1}
    v_rsq_f32 v{a+1}, v{a+1}
    s_nop 0""")

def a_touch(g, name):
    e = g.e
    e(f"""s_lshr_b32 s36, s2, 3
    s_lshr_b32 s37, s36, 2                 ; 0..5
    s_and_b32 s38, s36, 3                  ; 0..3
    s_cmp_ge_u32 s{S_W}, 2
    s_cbranch_scc1 {name}_tw""")
    g.srd_from(8, PTR["x"], 0, FMSZ)
    e(f"""v_mul_u32_u24 v5, 52, v1
    v_lshrrev_b32 v5, 8, v5                ; lane/5
    v_mul_u32_u24 v6, 5, v5
    v_sub_u32 v6, v1, v6
    v_mul_u32_u24 v5, 1152, v5
    v_lshl_add_u32 v5, v6, 7, v5
    s_lshl_b32 s39, s20, 7
    s_mul_i32 s40, s37, 22
    s_add_u32 s39, s39, s40
    s_mul_i32 s40, s{S_W}, 11
    s_add_u32 s39, s39, s40
    s_mul_i32 s39, s39, 1152
    s_add_u32 s39, s39, 512
    buffer_load_dword v160, v5, s[8:11], s39 offen
    s_branch {name}_tw2""")
    g.lab(f"{name}_tw")
    e(f"s_cmp_ge_u32 s{S_W}, 7\ns_cbranch_scc1 {name}_tw2")
    g.srd_from(8, PTR["wqkv"], 0, D*3*D*2)
    e(f"""s_mul_i32 s39, s21, 288
    s_sub_u32 s40, s21, 4
    s_mul_i32 s40, s40, 144
    s_add_u32 s40, s40, 1152
    s_cmp_ge_u32 s21, 4
    s_cselect_b32 s39, s40, s39
    v_and_b32 v5, 3, v1
    v_mul_u32_u24 v6, 96, v5
    v_min_u32 v6, 284, v6
    v_and_b32 v7, 1, v5
    v_mul_u32_u24 v7, 140, v7
    v_lshrrev_b32 v5, 1, v5
    v_mul_u32_u24 v5, 1152, v5
    v_add_u32 v7, v7, v5
    s_cselect_b64 vcc, -1, 0
    v_cndmask_b32 v6, v6, v7, vcc
    v_lshrrev_b32 v5, 2, v1
    v_mul_u32_u24 v5, 3456, v5
    v_add_u32 v5, v5, v6
    s_mul_i32 s40, s38, 80
    s_add_u32 s40, s40, {256 - 32}
    s_lshl_b32 s41, s{S_W}, 4
    s_add_u32 s40, s40, s41
    s_mul_i32 s40, s40, 3456
    s_add_u32 s39, s39, s40
    buffer_load_dword v160, v5, s[8:11], s39 offen""")
    g.lab(f"{name}_tw2")

def phase_a_gemm(m):
    g = m.g; e = g.e; name = m.lab("A")
    lanes(g)
    e("""s_and_b32 s23, s2, 7
    s_lshr_b32 s24, s2, 3
    s_lshr_b32 s20, s23, 1
    s_lshl_b32 s20, s20, 2
    s_and_b32 s25, s24, 3
    s_add_u32 s20, s20, s25              ; rb128
    s_and_b32 s21, s23, 1
    s_mul_i32 s21, s21, 6
    s_lshr_b32 s25, s24, 2
    s_add_u32 s21, s21, s25              ; cg""")
    e(f"s_cmp_ge_u32 s{S_W}, 8\ns_cbranch_scc1 {name}_load")
    ACC, WF, XF = 8, 80, 116
    VX, VW = 124, 126
    e(f"""s_and_b32 s24, s{S_W}, 3          ; sp
    s_lshr_b32 s25, s{S_W}, 2              ; kh""")
    xfrag_base(g, VX, 5)
    e(f"""s_cmp_eq_u32 s25, 1
    s_cselect_b64 vcc, -1, 0
    s_lshl_b32 s26, s24, 12
    s_lshl_b32 s29, s25, 11
    s_add_u32 s30, s26, s29
    s_xor_b32 s29, s29, 2048
    s_add_u32 s31, s26, s29
    v_cndmask_b32 v{VX}, v{VX}, v{VX+1}, vcc
    v_add_u32 v{VX+1}, s31, v{VX}
    v_add_u32 v{VX}, s30, v{VX}""")
    trbase288(g, VW, 5)
    e(f"""s_mul_i32 s26, s25, 9216
    s_add_u32 s26, s26, 16384
    v_add_u32 v{VW}, s26, v{VW}""")
    for i in range(72): e(f"v_mov_b32 v{ACC+i}, 0")
    e(f"s_mov_b32 s33, 0x3f803f80\ns_mov_b32 s27, 0\ns_cmp_ge_u32 s21, 4\ns_cbranch_scc1 {name}_kvloop")
    XF2 = 136
    def rd_unit(xdst):
        e(f"ds_read_b128 v[{xdst}:{xdst+3}], v5")
        e(f"ds_read_b128 v[{xdst+4}:{xdst+7}], v7")
    def addr(su):
        e(f"""s_and_b32 s28, s{su}, 3
        s_mul_i32 s28, s28, {UNIT}
        v_add_u32 v5, s28, v{VX}
        v_add_u32 v7, s28, v{VX+1}
        v_add_u32 v6, s28, v{VW}""")
    def cloop(tag, kv):
        e("s_barrier")
        addr(27)
        rd_unit(XF)
        for t in range(9):
            a = WF + 4*t
            e(f"ds_read_b64_tr_b16 v[{a}:{a+1}], v6 offset:{t*32}")
            e(f"ds_read_b64_tr_b16 v[{a+2}:{a+3}], v6 offset:{t*32 + 8*288}")
        def rnd(xc, xn, last):
            if not last:
                e("s_add_u32 s29, s27, 1")
                addr(29)
                e("s_barrier")
                if mega.STAMP == 1:
                    e(f"s_memtime s[80:81]\ns_add_u32 m0, s27, 40\ns_waitcnt lgkmcnt(0)\ns_nop 3\nv_writelane_b32 v{VST}, s80, m0")
                rd_unit(xn)
            for t in range(9):
                if not last: e(f"s_waitcnt lgkmcnt({min(15, 2*(8-t) + 2 + 2*t)})")
                else: e(f"s_waitcnt lgkmcnt({min(15, 2*(8-t))})")
                a = WF + 4*t
                for si in range(2):
                    c = ACC + (si*9 + t)*4; x = xc + 4*si
                    if kv: e(f"v_mfma_f32_16x16x32_bf16 v[{c}:{c+3}], v[{x}:{x+3}], v[{a}:{a+3}], v[{c}:{c+3}]")
                    else: e(f"v_mfma_f32_16x16x32_bf16 v[{c}:{c+3}], v[{a}:{a+3}], v[{x}:{x+3}], v[{c}:{c+3}]")
                if not last:
                    e(f"ds_read_b64_tr_b16 v[{a}:{a+1}], v6 offset:{t*32}")
                    e(f"ds_read_b64_tr_b16 v[{a+2}:{a+3}], v6 offset:{t*32 + 8*288}")
        g.lab(f"{name}_{tag}l")
        rnd(XF, XF2, False)
        e("s_add_u32 s27, s27, 1")
        rnd(XF2, XF, False)
        e(f"s_add_u32 s27, s27, 1\ns_cmp_lt_u32 s27, 8\ns_cbranch_scc1 {name}_{tag}l")
        rnd(XF, XF2, True)
    cloop("q", False)
    e(f"s_branch {name}_cdone")
    g.lab(f"{name}_kvloop")
    cloop("kv", True)
    g.lab(f"{name}_cdone")
    e("s_waitcnt vmcnt(0) lgkmcnt(0)")
    e("s_barrier")
    stamp(m, "A:gemm")
    rt_all(m, 8)
    e(f"""s_mul_i32 s28, s{S_W}, 9216
    v_add_u32 v5, s28, v2""")
    for t in range(9): e(f"ds_write_b128 v5, v[{ACC+36+4*t}:{ACC+36+4*t+3}] offset:{t*1024}")
    e("s_waitcnt lgkmcnt(0)\ns_barrier")
    e(f"""s_xor_b32 s28, s{S_W}, 4
    s_mul_i32 s28, s28, 9216
    v_add_u32 v5, s28, v2""")
    for t in range(9): e(f"ds_read_b128 v[{ACC+36+4*t}:{ACC+36+4*t+3}], v5 offset:{t*1024}")
    e(f"""s_lshl_b32 s26, s24, 1
    s_add_u32 s26, s26, s25
    s_cmp_ge_u32 s21, 4
    s_cbranch_scc1 {name}_kvepi""")
    ST, CS, AD = 80, 84, 140
    e(f"""s_lshl_b32 s28, s26, 7
    s_add_u32 s28, s28, {A_TAB}
    v_lshl_add_u32 v5, v3, 3, s28
    ds_read_b64 v[{ST}:{ST+1}], v5
    ds_read_b64 v[{ST+2}:{ST+3}], v5 offset:1024
    v_lshlrev_b32 v6, 4, v4
    v_add_u32 v6, {A_TAB}, v6""")
    for t in range(9):
        e(f"ds_read_b128 v[{CS+4*t}:{CS+4*t+3}], v6 offset:{A_CS2 - A_TAB + t*64}")
    e("s_waitcnt lgkmcnt(0)")
    for i in range(36): e(f"v_add_f32 v{ACC+i}, v{ACC+i}, v{ACC+36+i}")
    stat_fin(g, ST, ST + 2)
    for t in range(9):
        e(f"ds_read_b128 v[{ACC+36+4*t}:{ACC+36+4*t+3}], v6 offset:{A_CS2 - A_TAB + 640 + t*64}")
    e(f"""s_mul_i32 s29, s{S_W}, 6144
    s_add_u32 s29, s29, {A_STG}
    v_add_u32 v7, s29, v2
    v_mov_b32 v124, 0
    v_mov_b32 v125, 0
    v_mov_b32 v126, 0
    v_mov_b32 v127, 0""")
    for k in range(6): e(f"ds_write_b128 v7, v[124:127] offset:{k*1024}")
    e(f"v_lshlrev_b32 v6, 3, v4\nv_add_u32 v6, {A_TAB}, v6")
    for t in range(9):
        for pr in range(2):
            e(f"ds_read_b32 v{AD + 2*t + pr}, v6 offset:{A_NTAB - A_TAB + (8*t + pr)*4}")
    e(f"""s_waitcnt lgkmcnt(0)
    v_lshlrev_b32 v5, 4, v3
    v_add_u32 v5, s29, v5""")
    for i in range(36): e(f"v_add_f32 v{CS+i}, v{CS+i}, v{ACC+36+i}")
    e(f"v_sub_f32 v{ST}, 0, v{ST}                 ; -mean")
    for t in range(9):
        c = ACC + 4*t; T1 = ACC + 36; T2 = ACC + 40
        for r in range(4): e(f"v_fmac_f32 v{c+r}, v{ST}, v{CS+4*t+r}")
        for r in range(4): e(f"v_mul_f32 v{c+r}, v{c+r}, v{ST+1}")
        phi4(g, c, T1, c)
        e(f"v_cvt_pk_bf16_f32 v{c}, v{c}, v{c+1}")
        e(f"v_cvt_pk_bf16_f32 v{c+1}, v{c+2}, v{c+3}")
        e(f"v_add_u32 v{AD+2*t}, v{AD+2*t}, v5")
        e(f"v_add_u32 v{AD+2*t+1}, v{AD+2*t+1}, v5")
        e(f"ds_write_b32 v{AD+2*t}, v{c}")
        e(f"ds_write_b32 v{AD+2*t+1}, v{c+1}")
    e("s_waitcnt lgkmcnt(0)")
    for k in range(6): e(f"ds_read_b128 v[{CS+4*k}:{CS+4*k+3}], v7 offset:{k*1024}")
    g.ws_srd(8, P_WS, "PQP")
    e(f"""s_lshl_b32 s28, s20, 3
    s_add_u32 s28, s28, s26              ; st_g
    s_lshl_b32 s30, s28, 5
    s_lshl_b32 s31, s21, 3
    s_add_u32 s30, s30, s31
    s_mul_i32 s30, s30, 768
    s_waitcnt lgkmcnt(0)""")
    for k in range(6):
        if k == 4: e("s_add_u32 s30, s30, 4096")
        e(f"buffer_store_dwordx4 v[{CS+4*k}:{CS+4*k+3}], v2, s[8:11], s30 offen offset:{(k%4)*1024} sc1")
    e(f"s_cmp_lg_u32 s21, 0\ns_cbranch_scc1 {name}_cend")
    g.ws_srd(8, P_WS, "XST")
    e(f"""s_lshl_b32 s28, s28, 4
    v_add_u32 v5, s28, v3
    v_lshlrev_b32 v5, 2, v5
    v_sub_f32 v{ST}, 0, v{ST}
    s_mov_b64 exec, 0xffff
    buffer_store_dword v{ST}, v5, s[8:11], 0 offen sc1
    s_mov_b64 exec, -1
    s_branch {name}_cend""")
    g.lab(f"{name}_kvepi")
    ST, CS = 80, 96
    e(f"""s_lshl_b32 s28, s26, 7
    s_add_u32 s28, s28, {A_TAB}
    v_lshl_add_u32 v5, v4, 5, s28
    ds_read_b128 v[{ST}:{ST+3}], v5
    ds_read_b128 v[{ST+4}:{ST+7}], v5 offset:16
    ds_read_b128 v[{ST+8}:{ST+11}], v5 offset:1024
    ds_read_b128 v[{ST+12}:{ST+15}], v5 offset:1040
    v_lshlrev_b32 v6, 2, v3
    v_add_u32 v6, {A_TAB}, v6""")
    for t in range(9):
        e(f"ds_read_b32 v{CS+t}, v6 offset:{A_CS2 - A_TAB + t*64}")
        e(f"ds_read_b32 v{CS+9+t}, v6 offset:{A_CS2 - A_TAB + 640 + t*64}")
    e("s_waitcnt lgkmcnt(0)")
    for i in range(36): e(f"v_add_f32 v{ACC+i}, v{ACC+i}, v{ACC+36+i}")
    for t in range(9): e(f"v_add_f32 v{CS+t}, v{CS+t}, v{CS+9+t}")
    for r in range(4): stat_fin(g, ST + 2*r, ST + 8 + 2*r)
    e("v_cmp_gt_u32 vcc, 8, v3\ns_mov_b64 s[34:35], vcc")
    for t in range(9):
        c = ACC + 4*t; T1 = ACC + 36; T2 = ACC + 40
        e(f"v_sub_f32 v{T1}, 0, v{CS+t}")
        for r in range(4): e(f"v_fmac_f32 v{c+r}, v{T1}, v{ST+2*r}")
        for r in range(4): e(f"v_mul_f32 v{c+r}, v{c+r}, v{ST+2*r+1}")
        if t < 4:
            phi4(g, c, T1, c)
        elif t == 4:
            phi4(g, c, T1, T2)
            for r in range(4): e(f"v_cndmask_b32 v{c+r}, v{c+r}, v{T2+r}, s[34:35]")
        e(f"v_cvt_pk_bf16_f32 v{c}, v{c}, v{c+1}")
        e(f"v_cvt_pk_bf16_f32 v{c+1}, v{c+2}, v{c+3}")
        e(f"v_mov_b32 v{c+2}, 0\nv_mov_b32 v{c+3}, 0")
    O4 = 148
    e(f"""v_mov_b32 v{O4+2}, 0x3f803f80
    v_cndmask_b32 v{O4}, v{ACC+16}, v{O4+2}, s[34:35]
    v_cndmask_b32 v{O4+1}, v{ACC+17}, v{O4+2}, s[34:35]
    v_mov_b32 v{O4+2}, 0
    v_mov_b32 v{O4+3}, 0
    s_nop 1""")
    def slot(a, b):
        bp = b - 4
        if abs(bp - a) <= 1: return 3*a + (bp - a + 1)
        return {2: 14, 3: 15, 4: 0}[a]
    pairs = [(0,4),(0,5),(1,4),(1,5),(1,6),(2,5),(2,6),(2,7),(3,6),(3,7),(3,8),(4,7),(4,8),(2,4),(3,4),(4,4)]
    assert sorted(slot(a, b) for a, b in pairs) == list(range(16))
    DD = 84
    for i, (a, b) in enumerate(pairs):
        A = O4 if b == 4 else ACC + 4*b
        e(f"v_mfma_f32_16x16x32_bf16 v[{DD+4*i}:{DD+4*i+3}], v[{A}:{A+3}], v[{ACC+4*a}:{ACC+4*a+3}], 0")
    e("s_barrier")
    e(f"""s_lshl_b32 s29, s{S_W}, 14
    v_add_u32 v5, s29, v2
    s_nop 7""")
    for i, (a, b) in enumerate(pairs):
        e(f"ds_write_b128 v5, v[{DD+4*i}:{DD+4*i+3}] offset:{slot(a, b)*1024}")
    e("s_waitcnt lgkmcnt(0)")
    g.lab(f"{name}_cend")
    e(f"s_branch {name}_join")

    g.lab(f"{name}_load")
    e(f"s_sub_u32 s24, s{S_W}, 8\ns_cmp_ge_u32 s24, 2\ns_cbranch_scc1 {name}_wload")
    VO = 8
    g.srd_from(8, PTR["x"], 0, FMSZ)
    e(f"""v_lshrrev_b32 v5, 3, v1
    v_mul_u32_u24 v5, 1152, v5
    v_and_b32 v6, 7, v1
    v_xor_b32 v7, v6, v4
    v_lshl_add_u32 v{VO}, v7, 4, v5
    v_or_b32 v7, 4, v4
    v_xor_b32 v7, v6, v7
    v_lshl_add_u32 v{VO+1}, v7, 4, v5
    s_lshl_b32 s26, s20, 7
    s_lshl_b32 s27, s24, 6
    s_add_u32 s26, s26, s27
    s_mul_i32 s26, s26, 1152
    s_lshl_b32 s27, s24, 13""")
    def xissue(unit_sgpr_slot, unit_sgpr_col):
        for mm in range(8):
            e(f"s_add_u32 m0, s30, {mm*1024}")
            e(f"s_add_u32 s32, s31, {mm*8*1152}")
            e(f"buffer_load_dwordx4 v{VO + (mm & 1)}, s[8:11], s32 offen lds")
    for u in range(2):
        e(f"s_add_u32 s30, s27, {u*UNIT}\ns_add_u32 s31, s26, {u*128}")
        xissue(None, None)
    VX2 = 10
    xfrag_base(g, VX2, 5)
    e(f"v_add_u32 v{VX2}, s27, v{VX2}\nv_add_u32 v{VX2+1}, s27, v{VX2+1}")
    SA = 16; FR = 48; ON = 80
    for i in range(32): e(f"v_mov_b32 v{SA+i}, 0")
    for i in range(4): e(f"v_mov_b32 v{ON+i}, 0x3f803f80")
    e("s_mov_b32 s28, 0")
    g.lab(f"{name}_xl")
    e(f"""s_cmp_le_u32 s28, 7
    s_cbranch_scc1 {name}_xb
    s_waitcnt vmcnt(0)
    s_branch {name}_xwd""")
    g.lab(f"{name}_xb")
    e("s_waitcnt vmcnt(8)")
    g.lab(f"{name}_xwd")
    if mega.STAMP == 1: e(f"s_memtime s[80:81]\ns_add_u32 m0, s28, 54\ns_waitcnt lgkmcnt(0)\ns_nop 3\nv_writelane_b32 v{VST}, s80, m0")
    e(f"""s_barrier
    s_cmp_gt_u32 s28, 6
    s_cbranch_scc1 {name}_xni
    s_add_u32 s29, s28, 2
    s_and_b32 s30, s29, 3
    s_mul_i32 s30, s30, {UNIT}
    s_add_u32 s30, s30, s27
    s_lshl_b32 s31, s29, 7
    s_add_u32 s31, s31, s26""")
    xissue(None, None)
    g.lab(f"{name}_xni")
    e(f"""s_and_b32 s29, s28, 3
    s_mul_i32 s29, s29, {UNIT}
    v_add_u32 v5, s29, v{VX2}
    v_add_u32 v6, s29, v{VX2+1}""")
    for st in range(4):
        e(f"ds_read_b128 v[{FR+8*st}:{FR+8*st+3}], v5 offset:{st*2048}")
        e(f"ds_read_b128 v[{FR+8*st+4}:{FR+8*st+7}], v6 offset:{st*2048}")
    for st in range(4):
        e(f"s_waitcnt lgkmcnt({6-2*st})")
        for kk in range(2):
            f = FR + 8*st + 4*kk
            e(f"v_mfma_f32_16x16x32_bf16 v[{SA+8*st}:{SA+8*st+3}], v[{ON}:{ON+3}], v[{f}:{f+3}], v[{SA+8*st}:{SA+8*st+3}]")
            e(f"v_mfma_f32_16x16x32_bf16 v[{SA+8*st+4}:{SA+8*st+7}], v[{f}:{f+3}], v[{f}:{f+3}], v[{SA+8*st+4}:{SA+8*st+7}]")
    e(f"s_add_u32 s28, s28, 1\ns_cmp_lt_u32 s28, 9\ns_cbranch_scc1 {name}_xl")
    e("""s_nop 7
    s_nop 1
    v_and_b32 v5, 3, v3
    v_lshrrev_b32 v6, 2, v3
    v_cmp_eq_u32 vcc, v6, v4
    s_mov_b64 s[34:35], vcc
    v_cmp_eq_u32 vcc, 1, v5
    s_mov_b64 s[36:37], vcc
    v_cmp_eq_u32 vcc, 2, v5
    s_mov_b64 s[38:39], vcc
    v_cmp_eq_u32 vcc, 3, v5
    s_mov_b64 s[40:41], vcc
    s_nop 1""")
    for st in range(4):
        q = SA + 8*st + 4
        e(f"""v_cndmask_b32 v{q}, v{q}, v{q+1}, s[36:37]
        v_cndmask_b32 v{q}, v{q}, v{q+2}, s[38:39]
        v_cndmask_b32 v{q}, v{q}, v{q+3}, s[40:41]
        v_cndmask_b32 v{q}, 0, v{q}, s[34:35]""")
        xsum_g(g, q, 7)
        e(f"v_mov_b32 v{SA+8*st+1}, v{q}")
    e(f"""s_lshl_b32 s29, s24, 9
    s_add_u32 s29, s29, {A_TAB}
    v_lshl_add_u32 v5, v3, 3, s29
    v_mov_b32 v8, 0
    v_mov_b32 v9, 0
    s_mov_b64 exec, 0xffff""")
    for st in range(4):
        e(f"ds_write_b64 v5, v[{SA+8*st}:{SA+8*st+1}] offset:{st*128}")
        e(f"ds_write_b64 v5, v[8:9] offset:{1024 + st*128}")
    e(f"s_mov_b64 exec, -1\ns_waitcnt lgkmcnt(0)\ns_branch {name}_ldone")
    g.lab(f"{name}_wload")
    VO = 8
    g.srd_from(8, PTR["wqkv"], 0, D*3*D*2)
    e(f"""s_sub_u32 s25, s24, 2                ; kk
    s_mul_i32 s26, s21, 288
    s_sub_u32 s27, s21, 4
    s_mul_i32 s27, s27, 144
    s_add_u32 s27, s27, 1152
    s_cmp_ge_u32 s21, 4
    s_cselect_b32 s26, s27, s26
    s_cselect_b32 s27, {1152 - 144}, 0""")
    e(f"""s_mul_i32 s29, s25, {32*3456}
    s_add_u32 s26, s26, s29
    s_mov_b32 s34, s27
    s_mul_i32 s27, s25, 9216
    s_add_u32 s27, s27, 16384""")
    for i in range(9):
        e(f"""v_add_u32 v5, {64*i}, v1
        v_mul_u32_u24 v6, 3641, v5
        v_lshrrev_b32 v6, 16, v6
        v_mul_u32_u24 v7, 18, v6
        v_sub_u32 v5, v5, v7""")
        swap23(g, 6, 7, 20)
        e(f"""v_mul_u32_u24 v7, 3456, v7
        v_lshl_add_u32 v7, v5, 4, v7
        v_add_u32 v20, s34, v7
        v_cmp_le_u32 vcc, 9, v5
        s_add_u32 m0, s27, {i*1024}
        s_nop 0
        v_cndmask_b32 v{VO+i}, v7, v20, vcc
        buffer_load_dwordx4 v{VO+i}, s[8:11], s26 offen lds""")
    def wissue():
        for i in range(9):
            e(f"s_add_u32 m0, s30, {i*1024}")
            e("s_nop 0")
            e(f"buffer_load_dwordx4 v{VO+i}, s[8:11], s31 offen lds")
    if mega.STAMP == 1: e("s_memtime s[80:81]\ns_waitcnt lgkmcnt(0)\nv_writelane_b32 v{VST}, s80, 52".replace("{VST}", str(VST)))
    for u in range(1, 2):
        e(f"s_add_u32 s30, s27, {u*UNIT}\ns_add_u32 s31, s26, {u*64*3456}")
        wissue()
    if mega.STAMP == 1: e("s_memtime s[80:81]\ns_waitcnt lgkmcnt(0)\nv_writelane_b32 v{VST}, s80, 53".replace("{VST}", str(VST)))

    VT = 20; CSA = 24; WF2 = 60
    trbase288(g, VT, 5)
    e(f"v_add_u32 v{VT}, s27, v{VT}")
    for i in range(36): e(f"v_mov_b32 v{CSA+i}, 0")
    for i in range(4): e(f"v_mov_b32 v{96+i}, 0x3f803f80")
    e("v_mov_b32 v127, v8")
    tile_tables(g, 100, 110)
    e("v_mov_b32 v8, v127")
    trbase288(g, 119, 5)
    e(f"""s_cmp_lg_u32 s25, 0
    s_cbranch_scc1 {name}_nt
    v_lshlrev_b32 v5, 1, v1""")
    for rep in range(2):
        if rep: e("v_add_u32 v5, 128, v5")
        e(f"""v_mul_u32_u24 v6, 3641, v5
        v_lshrrev_b32 v6, 16, v6
        v_mul_u32_u24 v7, 18, v6
        v_sub_u32 v7, v5, v7
        v_mul_u32_u24 v6, 768, v6
        v_lshrrev_b32 v21, 3, v7
        v_lshl_add_u32 v6, v21, 8, v6
        v_and_b32 v7, 7, v7
        v_lshl_add_u32 v6, v7, 1, v6
        v_lshlrev_b32 v7, 1, v5
        v_add_u32 v7, {A_TAB}, v7""")
        if rep: e("s_mov_b64 exec, 0xff")
        e(f"ds_write_b32 v7, v6 offset:{A_NTAB - A_TAB}")
        if rep: e("s_mov_b64 exec, -1")
    g.lab(f"{name}_nt")
    e("s_mov_b32 s28, 0")
    g.lab(f"{name}_wl")
    e(f"""s_cmp_le_u32 s28, 7
    s_cbranch_scc1 {name}_wb
    s_waitcnt vmcnt(9)
    s_branch {name}_wwd""")
    g.lab(f"{name}_wb")
    e("s_waitcnt vmcnt(9)")
    g.lab(f"{name}_wwd")
    if mega.STAMP == 1: e(f"s_memtime s[80:81]\ns_add_u32 m0, s28, 54\ns_waitcnt lgkmcnt(0)\ns_nop 3\nv_writelane_b32 v{VST}, s80, m0")
    e(f"""s_barrier
    s_cmp_gt_u32 s28, 6
    s_cbranch_scc1 {name}_wni
    s_add_u32 s29, s28, 2
    s_and_b32 s30, s29, 3
    s_mul_i32 s30, s30, {UNIT}
    s_add_u32 s30, s30, s27
    s_mul_i32 s31, s29, {64*3456}
    s_add_u32 s31, s31, s26""")
    wissue()
    g.lab(f"{name}_wni")
    Lt = m.lab("xt")
    e(f"""s_cmp_lg_u32 s28, 7
    s_cbranch_scc1 {Lt}
    s_mov_b32 s44, s21
    s_mov_b32 s45, s26
    s_mov_b32 s49, s27
    s_mov_b32 s50, s28
    s_and_b32 s21, s2, 7
    s_lshr_b32 s46, s2, 3
    s_lshl_b32 s46, s46, 1
    s_add_u32 s46, s46, s25
    s_add_u32 s46, s46, 96
    s_mul_i32 s47, s25, 9216
    s_add_u32 s47, s47, {A_PK}""")
    tile_params(g, 46)
    e("s_mov_b32 s48, s32")
    tile_issue(g, 47, 100, 110)
    e("s_mov_b32 s21, s44\ns_mov_b32 s26, s45\ns_mov_b32 s27, s49\ns_mov_b32 s28, s50")
    g.lab(Lt)
    e(f"""s_and_b32 s29, s28, 3
    s_mul_i32 s29, s29, {UNIT}
    v_add_u32 v5, s29, v{VT}""")
    for t in range(9):
        a = WF2 + 4*t
        e(f"ds_read_b64_tr_b16 v[{a}:{a+1}], v5 offset:{t*32}")
        e(f"ds_read_b64_tr_b16 v[{a+2}:{a+3}], v5 offset:{t*32 + 8*288}")
    for t in range(9):
        e(f"s_waitcnt lgkmcnt({min(15, 16 - 2*t)})")
        a = WF2 + 4*t; c = CSA + 4*t
        e(f"v_mfma_f32_16x16x32_bf16 v[{c}:{c+3}], v[{a}:{a+3}], v[96:99], v[{c}:{c+3}]")
    e(f"s_add_u32 s28, s28, 1\ns_cmp_lt_u32 s28, 9\ns_cbranch_scc1 {name}_wl")
    e(f"""s_mul_i32 s29, s25, 640
    s_add_u32 s29, s29, {A_CS2}
    v_lshlrev_b32 v5, 4, v4
    v_add_u32 v5, s29, v5
    v_cmp_eq_u32 vcc, 0, v3
    s_nop 7
    s_mov_b64 exec, vcc""")
    for t in range(9):
        e(f"ds_write_b128 v5, v[{CSA+4*t}:{CSA+4*t+3}] offset:{t*64}")
    e("s_mov_b64 exec, -1\ns_waitcnt lgkmcnt(0)")
    g.lab(f"{name}_ldone")
    e(f"""s_barrier
    s_barrier
    s_cmp_ge_u32 s21, 4
    s_cbranch_scc0 {name}_join
    s_barrier""")
    g.lab(f"{name}_join")
    e(f"s_cmp_ge_u32 s21, 4\ns_cbranch_scc0 {name}_end")
    e("s_barrier")
    stamp(m, "A:kvtab")
    stamp(m, "A:rdy")
    lanes(g)
    g.ws_srd(8, P_WS, "KVT")
    e("s_sub_u32 s26, s21, 4\ns_lshl_b32 s26, s26, 2")
    for rep in range(2):
        e(f"""v_add_u32 v5, {768*rep}, v0
        v_mul_u32_u24 v6, 49057, v5
        v_lshrrev_b32 v6, 24, v6             ; h' = i/342
        v_mul_u32_u24 v7, 342, v6
        v_sub_u32 v7, v5, v7                 ; rem
        v_mul_u32_u24 v8, 3641, v7
        v_lshrrev_b32 v8, 16, v8             ; row
        v_mul_u32_u24 v9, 18, v8
        v_sub_u32 v9, v7, v9                 ; d
        v_mul_u32_u24 v10, 18, v6            ; 18h'
        v_add_u32 v11, v10, v8
        v_add_u32 v11, 8, v11                ; R
        v_cmp_eq_u32 vcc, 18, v8
        s_mov_b64 s[36:37], vcc              ; z row
        v_add_u32 v12, v10, v9               ; C
        v_cndmask_b32 v11, v11, 0, vcc       ; R=0 for z
        v_lshrrev_b32 v14, 4, v12            ; a
        v_lshrrev_b32 v15, 4, v11            ; b'
        v_lshlrev_b32 v16, 1, v14
        v_add_u32 v16, v16, v15
        v_add_u32 v16, 1, v16                ; slot = 2a + b' + 1
        v_add_u32 v17, 12, v14
        v_cmp_le_u32 vcc, 2, v14
        s_and_b64 vcc, vcc, s[36:37]
        s_nop 1
        v_cndmask_b32 v16, v16, v17, vcc
        v_cmp_eq_u32 vcc, 4, v14
        s_and_b64 vcc, vcc, s[36:37]
        s_nop 1
        v_cndmask_b32 v16, v16, 0, vcc
        v_lshlrev_b32 v16, 10, v16
        v_bfe_u32 v17, v11, 2, 2             ; g
        v_lshl_add_u32 v16, v17, 8, v16
        v_and_b32 v17, 15, v12
        v_lshl_add_u32 v16, v17, 4, v16
        v_and_b32 v17, 3, v11
        v_lshl_add_u32 v16, v17, 2, v16
        v_add_u32 v17, 0x10000, v16
        ds_read_b32 v20, v16
        ds_read_b32 v21, v16 offset:16384
        ds_read_b32 v22, v16 offset:32768
        ds_read_b32 v23, v16 offset:49152
        ds_read_b32 v24, v17
        ds_read_b32 v25, v17 offset:16384
        ds_read_b32 v26, v17 offset:32768
        ds_read_b32 v27, v17 offset:49152
        v_add_u32 v6, s26, v6
        v_mul_u32_u24 v6, 20, v6
        v_add_u32 v6, v6, v8
        v_mul_u32_u24 v6, 24, v6
        v_add_u32 v6, v6, v9
        v_lshlrev_b32 v6, 2, v6
        v_cmp_gt_u32 vcc, 1368, v5
        s_waitcnt lgkmcnt(0)
        v_add_f32 v20, v20, v21
        v_add_f32 v22, v22, v23
        v_add_f32 v24, v24, v25
        v_add_f32 v26, v26, v27
        v_add_f32 v20, v20, v22
        v_add_f32 v24, v24, v26
        v_add_f32 v13, v20, v24
        s_and_saveexec_b64 s[34:35], vcc
        s_cbranch_execz {name}_ns{rep}
        buffer_atomic_add_f32 v13, v6, s[8:11], 0 offen""")
        g.lab(f"{name}_ns{rep}")
        e("s_mov_b64 exec, -1")
    g.lab(f"{name}_end")
    stamp(m, "A:epi")


def tile_params(g, sidx):
    e = g.e
    e(f"""s_cmp_ge_u32 s{sidx}, 72
    s_cselect_b32 s23, 1, 0
    s_cselect_b32 s24, 72, 0
    s_sub_u32 s26, s{sidx}, s24
    s_lshr_b32 s27, s26, 2
    s_and_b32 s26, s26, 3
    s_mov_b32 s28, 9216
    s_cmp_eq_u32 s23, 1
    s_cselect_b32 s28, 1152, s28
    s_cselect_b32 s12, s{PTR['w4']}, s{PTR['w3']}
    s_cselect_b32 s13, s{PTR['w4']+1}, s{PTR['w3']+1}
    s_mov_b32 s14, {D*F*2}
    s_mov_b32 s15, 0x20000
    s_mul_i32 s29, s27, {32*9216}
    s_mul_i32 s30, s21, 1152
    s_add_u32 s29, s29, s30
    s_mul_i32 s30, s21, {576*1152}
    s_mul_i32 s32, s27, {32*1152}
    s_add_u32 s30, s30, s32
    s_cmp_eq_u32 s23, 1
    s_cselect_b32 s29, s30, s29
    s_mul_i32 s30, s26, 288
    s_add_u32 s29, s29, s30
    s_mul_i32 s32, s21, 12
    s_mul_i32 s33, s26, 3
    s_add_u32 s32, s32, s33
    s_mul_i32 s32, s32, 108
    s_mul_i32 s33, s23, 54
    s_add_u32 s32, s32, s33
    s_mul_i32 s33, s27, 3
    s_add_u32 s32, s32, s33
    s_lshl_b32 s32, s32, 10""")
def tile_issue(g, slot_sgpr, TK=40, TJ=50):
    e = g.e
    for i in range(9):
        e(f"""v_mul_lo_u32 v7, v{TK+i}, s28
        v_add_u32 v7, v7, v{TJ+i}
        s_add_u32 m0, s{slot_sgpr}, {i*1024}
        s_nop 0
        buffer_load_dwordx4 v7, s[12:15], s29 offen lds""")
def tile_store(g, slot_sgpr, sdest, TB=59):
    e = g.e
    e(f"v_add_u32 v6, s{slot_sgpr}, v{TB}")
    for t in range(9):
        e(f"ds_read_b64_tr_b16 v[{64+4*t}:{65+4*t}], v6 offset:{t*32}")
        e(f"ds_read_b64_tr_b16 v[{66+4*t}:{67+4*t}], v6 offset:{t*32+2304}")
    e("s_waitcnt lgkmcnt(0)")
    for t in range(9):
        if t % 3 == 0: e(f"s_add_u32 s33, s{sdest}, {(t//3)*WP_WAVE}")
        e(f"buffer_store_dwordx4 v[{64+4*t}:{67+4*t}], v2, s[16:19], s33 offen offset:{(t%3)*1024} sc1")

def tile_tables(g, TK=40, TJ=50):
    e = g.e
    for i in range(9):
        e(f"""v_add_u32 v5, {64*i}, v1
        v_mul_u32_u24 v6, 3641, v5
        v_lshrrev_b32 v6, 16, v6
        v_mul_u32_u24 v7, 18, v6
        v_sub_u32 v5, v5, v7
        v_lshlrev_b32 v{TJ+i}, 4, v5""")
        swap23(g, 6, TK + i, 8)

def phase_a_helper(m):
    g = m.g; e = g.e; name = m.lab("H")
    lanes(g)
    e("s_sub_u32 s20, s2, 192               ; hb")
    import os
    if os.environ.get("HDELAY"):
        e(f"s_mov_b32 s30, {int(os.environ['HDELAY'])}")
        Ld = m.lab("dl"); g.lab(Ld)
        e(f"s_sleep 16\ns_sub_u32 s30, s30, 1\ns_cmp_lg_u32 s30, 0\ns_cbranch_scc1 {Ld}")
    tile_tables(g)
    trbase288(g, 59, 5)
    g.ws_srd(16, P_WS, "WP")
    e(f"""s_and_b32 s21, s20, 7
    s_lshr_b32 s25, s20, 3
    s_mul_i32 s25, s25, 12
    s_add_u32 s25, s25, s{S_W}
    s_mul_i32 s34, s{S_W}, 9216          ; slot A""")
    tile_params(g, 25)
    e("s_mov_b32 s36, s32                   ; dest A")
    tile_issue(g, 34)
    e("s_mul_i32 s38, s20, 768\nv_add_u32 v5, s38, v0")
    specs = (("IMGO", "wo", "O", 6080, True), ("IMG1", "w1", "nat", 5760, False), ("IMG2", "w2", "nat", 5760, True))
    for k, (reg, wname, kind, per_ng, skip9) in enumerate(specs):
        g.srd_from(8, PTR[wname], 0, D*D*2)
        e(f"""v_cvt_f32_u32 v6, v5
        v_add_f32 v6, 0.5, v6
        v_mul_f32 v6, {hx(1.0/per_ng)}, v6
        v_cvt_u32_f32 v6, v6                     ; ng
        v_mul_u32_u24 v7, {per_ng}, v6
        v_sub_u32 v7, v5, v7
        v_mul_u32_u24 v8, 6554, v7
        v_lshrrev_b32 v8, 16, v8
        v_mul_u32_u24 v9, 10, v8
        v_sub_u32 v9, v7, v9                     ; jj""")
        krow_code(g, 8, 10, 12, kind)
        e(f"""v_mul_u32_u24 v11, 1152, v10
        v_mul_u32_u24 v12, 144, v6
        v_add_u32 v11, v11, v12
        v_lshl_add_u32 v11, v9, 4, v11
        buffer_load_dwordx4 v[{20+4*k}:{23+4*k}], v11, s[8:11], 0 offen
        v_lshlrev_b32 v{32+k}, 4, v5
        v_cmp_gt_u32 vcc, {8*per_ng}, v5""")
        if skip9:
            e("s_mov_b64 s[30:31], vcc\nv_cmp_ne_u32 vcc, 9, v9\ns_and_b64 vcc, vcc, s[30:31]")
        e(f"v_mov_b32 v35, 0x7fff0000\ns_nop 0\nv_cndmask_b32 v{32+k}, v35, v{32+k}, vcc")
    L = m.lab("wb")
    e(f"""s_mul_i32 s39, s20, 12
    s_add_u32 s39, s39, s{S_W}               ; tau
    s_cmp_ge_u32 s39, 296
    s_cselect_b32 s40, 0, 1
    s_cmp_ge_u32 s39, 152
    s_cselect_b32 s41, 1, 0                  ; which
    s_cselect_b32 s42, 152, 0
    s_sub_u32 s39, s39, s42
    s_lshl_b32 s39, s39, 2
    s_cmp_eq_u32 s40, 0
    s_cbranch_scc1 {L}_nl
    v_add_u32 v8, s39, v4
    s_cmp_eq_u32 s41, 1
    s_cbranch_scc1 {L}_k2""")
    krow_code(g, 8, 10, 12, "O")
    g.srd_from(8, PTR["wo"], 0, D*D*2)
    e(f"s_branch {L}_k3")
    g.lab(f"{L}_k2")
    krow_code(g, 8, 10, 12, "nat")
    g.srd_from(8, PTR["w2"], 0, D*D*2)
    g.lab(f"{L}_k3")
    e("v_mul_u32_u24 v11, 1152, v10\nv_lshl_add_u32 v11, v3, 4, v11")
    for i in range(4):
        e(f"buffer_load_dwordx4 v[{100+4*i}:{103+4*i}], v11, s[8:11], 0 offen offset:{i*256}")
    e("""v_mov_b32 v116, 0
    v_mov_b32 v117, 0
    v_mov_b32 v118, 0
    v_mov_b32 v119, 0
    s_mov_b64 exec, 0x00ff00ff00ff00ff
    buffer_load_dwordx4 v[116:119], v11, s[8:11], 0 offen offset:1024
    s_mov_b64 exec, -1""")
    g.lab(f"{L}_nl")
    e("s_waitcnt vmcnt(0)")
    stamp(m, "H:ld")
    for k, (reg, wname, kind, per_ng, skip9) in enumerate(specs):
        g.ws_srd(12, P_WS, reg)
        e(f"buffer_store_dwordx4 v[{20+4*k}:{23+4*k}], v{32+k}, s[12:15], 0 offen sc1")
    e(f"s_cmp_eq_u32 s40, 0\ns_cbranch_scc1 {L}")
    e("s_mov_b32 s24, 0x3f803f80\nv_mov_b32 v120, 0")
    for r in range(100, 120): e(f"v_dot2_f32_bf16 v120, v{r}, s24, v120")
    e("s_nop 3")
    for sh in (8, 4, 2, 1):
        e(f"v_add_f32_dpp v120, v120, v120 row_ror:{sh} row_mask:0xf bank_mask:0xf\ns_nop 1")
    e(f"""v_mul_f32 v120, {hx(1.0/576)}, v120
    v_cvt_pk_bf16_f32 v121, v120, v120
    v_lshlrev_b32 v122, 16, v121
    v_sub_f32 v122, v120, v122
    v_and_b32 v121, 0xffff, v121
    v_cvt_pk_bf16_f32 v122, v122, v122
    v_lshl_or_b32 v124, v122, 16, v121
    v_mov_b32 v125, 0
    v_mov_b32 v126, 0
    v_mov_b32 v127, 0
    s_mov_b32 s42, {IMGO_SZ}
    s_cmp_eq_u32 s41, 1
    s_cselect_b32 s42, {IMG_SZ}, s42
    v_mul_u32_u24 v12, 160, v8
    v_mul_lo_u32 v13, v3, s42
    v_add_u32 v12, v12, v13
    v_add_u32 v12, 144, v12
    s_cbranch_scc1 {L}_s2""")
    g.ws_srd(12, P_WS, "IMGO")
    e(f"s_branch {L}_s3")
    g.lab(f"{L}_s2")
    g.ws_srd(12, P_WS, "IMG2")
    g.lab(f"{L}_s3")
    e("""s_mov_b64 exec, 0x00ff00ff00ff00ff
    buffer_store_dwordx4 v[124:127], v12, s[12:15], 0 offen sc1
    s_mov_b64 exec, -1""")
    g.lab(L)
    LI = m.lab("hi")
    e(f"""s_waitcnt vmcnt(0)
    s_barrier
    s_cmp_lg_u32 s{S_W}, 0
    s_cbranch_scc1 {LI}
    s_and_b32 s82, s20, 7
    s_add_u32 s82, s82, {CNT_IMG}
    s_lshl_b32 s82, s82, 7
    v_mov_b32 v8, s82
    v_mov_b32 v6, 1
    s_mov_b64 exec, 1
    buffer_atomic_add v6, v8, s[{SRD_CNT}:{SRD_CNT+3}], 0 offen sc1
    s_mov_b64 exec, -1""")
    g.lab(LI)
    e("s_waitcnt vmcnt(0)")
    tile_store(g, 34, 36)
    e("s_waitcnt vmcnt(0)\ns_barrier")
    La = m.lab("ha")
    e(f"""s_cmp_lg_u32 s{S_W}, 0
    s_cbranch_scc1 {La}
    s_add_u32 s82, s21, {CNT_WP}
    s_lshl_b32 s82, s82, 7
    v_mov_b32 v7, s82
    v_mov_b32 v6, 1
    s_mov_b64 exec, 1
    buffer_atomic_add v6, v7, s[{SRD_CNT}:{SRD_CNT+3}], 0 offen sc1
    s_mov_b64 exec, -1""")
    g.lab(La)
    arrive_global(m)
    stamp(m, "H:end")
    rt_all(m, 1)

def a_touch_part(m, spart, nrep=2):
    g = m.g; e = g.e
    e(f"""s_and_b32 s44, s2, 7
    s_lshr_b32 s45, s2, 3
    s_mul_i32 s45, s45, 432
    s_mul_i32 s46, s{spart}, 108
    s_add_u32 s45, s45, s46
    s_and_b32 s46, s44, 1
    s_cmp_eq_u32 s46, 1
    s_cselect_b32 s46, 11, 0
    s_cselect_b32 s47, 7, 12
    s_cselect_b32 s52, 20, 18
    s_lshr_b32 s44, s44, 1
    s_mul_i32 s44, s44, {512*1152}""")
    for rep in range(nrep):
        L = m.lab("tp")
        e(f"""v_add_u32 v120, s45, v1
        v_add_u32 v120, {64*rep}, v120
        v_lshrrev_b32 v121, 4, v120
        v_and_b32 v122, 15, v120
        v_add_u32 v123, s46, v122
        v_subrev_u32 v124, s47, v122
        v_add_u32 v124, s52, v124
        v_cmp_gt_u32 vcc, s47, v122
        v_mul_u32_u24 v121, 3456, v121
        v_subrev_u32 v125, 9216, v120
        v_cndmask_b32 v123, v124, v123, vcc
        v_min_u32 v123, 26, v123
        v_lshl_add_u32 v121, v123, 7, v121      ; W offset
        v_lshlrev_b32 v125, 7, v125
        v_add_u32 v125, s44, v125               ; x offset
        v_cmp_gt_u32 vcc, 9216, v120
        s_cmp_ge_u32 s45, {9216 - 64*rep}
        s_cbranch_scc1 {L}_x""")
        g.srd_from(48, PTR["wqkv"], 0, D*3*D*2)
        e(f"""v_mov_b32 v126, 0x7fff0000
        s_nop 0
        v_cndmask_b32 v121, v126, v121, vcc
        buffer_load_dword v164, v121, s[48:51], 0 offen
        s_branch {L}_e""")
        g.lab(f"{L}_x")
        g.srd_from(48, PTR["x"], 0, FMSZ)
        e("buffer_load_dword v164, v125, s[48:51], 0 offen")
        g.lab(f"{L}_e")

def a_touch_all(m):
    g = m.g; e = g.e
    L = m.lab("ta")
    e(f"""s_cmp_ge_u32 s{S_W}, 7
    s_cbranch_scc1 {L}
    s_and_b32 s23, s2, 7
    s_lshr_b32 s24, s2, 3
    s_mul_i32 s24, s24, 432
    v_add_u32 v5, s24, v0                  ; slot 0..13823 (+)
    s_and_b32 s25, s23, 1
    s_cmp_eq_u32 s25, 1
    s_cselect_b32 s26, 11, 0
    s_cselect_b32 s27, 7, 12
    s_cselect_b32 s28, 20, 18
    v_lshrrev_b32 v8, 4, v5
    v_and_b32 v9, 15, v5
    v_add_u32 v10, s26, v9
    v_subrev_u32 v11, s27, v9
    v_add_u32 v11, s28, v11
    v_cmp_gt_u32 vcc, s27, v9
    v_mul_u32_u24 v8, 3456, v8
    v_subrev_u32 v12, 9216, v5             ; x slot
    v_cndmask_b32 v10, v11, v10, vcc
    v_min_u32 v10, 26, v10
    v_lshl_add_u32 v8, v10, 7, v8
    v_lshlrev_b32 v12, 7, v12
    s_lshr_b32 s25, s23, 1
    s_mul_i32 s25, s25, {512*1152}
    v_cmp_gt_u32 vcc, 9216, v5
    s_and_saveexec_b64 s[30:31], vcc
    s_cbranch_execz {L}_x""")
    g.srd_from(8, PTR["wqkv"], 0, D*3*D*2)
    e("buffer_load_dword v164, v8, s[8:11], 0 offen")
    g.lab(f"{L}_x")
    e(f"""s_andn2_b64 exec, s[30:31], exec
    s_cbranch_execz {L}_y""")
    g.srd_from(8, PTR["x"], 0, FMSZ)
    e("buffer_load_dword v164, v12, s[8:11], s25 offen")
    g.lab(f"{L}_y")
    e("s_mov_b64 exec, -1")
    g.lab(L)

def phase_a(m):
    g = m.g; e = g.e
    L = m.lab("PA")
    a_touch_all(m)
    wait_ready(m)
    e(f"s_cmp_ge_u32 s2, 192\ns_cbranch_scc1 {L}_h")
    phase_a_gemm(m)
    La = m.lab("aw")
    e(f"""s_cmp_lt_u32 s{S_W}, 10
    s_cbranch_scc1 {La}
    s_cmp_ge_u32 s21, 4
    s_cbranch_scc1 {La}
    s_branch {La}n""")
    g.lab(La)
    e("s_waitcnt vmcnt(0)")
    g.lab(La + "n")
    e("s_barrier")
    stamp(m, "A:drain")
    rt_all(m, 1)
    arrive_global(m)
    g.lab(f"{L}_k")
    e(f"s_cmp_lt_u32 s{S_W}, 10\ns_cbranch_scc1 {L}_j")
    lanes(g)
    g.ws_srd(16, P_WS, "WP")
    e("s_waitcnt vmcnt(0)")
    tile_store(g, 47, 48, 119)
    e(f"s_branch {L}_j")
    g.lab(f"{L}_h")
    phase_a_helper(m)
    g.lab(f"{L}_j")
```

```python
import sys, os
from gl import *
import mega2 as mega
from mega2 import *
import phasea
from phasea import *
mega.STAMP = int(os.environ.get("STAMP", 0))
mega.MAPR = int(os.environ.get('MAPR', 16))
mega.PKG = int(os.environ.get('PKG', 0))
mega.PRIO = tuple(int(x) for x in os.environ.get('PRIO', '3,2,0').split(','))
mega.RINGK = int(os.environ.get('RINGK', 3))
mega.NPRE = int(os.environ.get('NPRE', 24))
g = Gen()
for n, b in [("WP", 96*108*1024), ("X1C", S*D*2), ("BASE", S*D*2), ("SS1", S*32*4), ("PART", 8*S*D*2),
             ("HC", S*D*2), ("SSH", S*32*4), ("MEANH", S*4), ("HH", S*D*2), ("CNT", 768*32),
             ("PQP", 128*32*768), ("KVT", 32*20*24*4), ("XST", S*4), ("IMGO", 8*IMGO_SZ), ("IMG1", 8*IMG_SZ), ("IMG2", 8*IMG_SZ)]:
    g.wsalloc(n, b)
NAMEK = NAME + "_kernel"
g.kernel(NAMEK, (256, 1, 1), 768, vgprs=168, lds=LDS_TOTAL, sgprs=96, launch=False)
g.launches.append(f"; @launch grid=(256,1,1) block=(768,1,1) lds={LDS_TOTAL}")
m = M(g, "mega")
prologue(m)
stamp(m, "start")
rt_all(m, 0)
init_counters(m, extra_zero="KVT")
phase_a(m)
phase_b(m, wp_signal=True)
phase_c(m)
phase_d(m, check_wp=True)
phase_ef(m, ring_pre=True)
phase_g(m)
stamp_flush(m, (1, 200))
g.lab("mega_done"); g.e("s_endpgm"); g.lab("mega_end")
g.write(sys.argv[1], "ws5.json")
if mega.STAMP == 1: open("stamps5.txt", "w").write(",".join(m.names))
```

```python
from gl import *
C1 = 2 * 0.7978845608028654 * 1.4426950408889634
C2 = C1 * 0.044715
WP_WAVE = 108 * 1024
FMSZ = S * D * 2
STAMP = 0
MAPR = 16
SPIN_MAX = 400000
CODE_PREFETCH = 1
POLL_SLEEP = 1
WPT2 = 0
IMG_TOUCH = 1
NPRE = 24
PKG = 0
PRIO = (3, 2, 0)
P_WS = 4
PTR = dict(x=60, wqkv=62, wo=64, w1=66, w2=68, w3=70, w4=72, out=76, dbg=78)
S_W = 22
SRD_CNT = 84
SRD_DBG = 88
VST = 167
CNT_B, CNT_C, CNT_D, CNT_E, CNT_G = 0, 32, 64, 96, 128
NCNT = 160

class M:
    def __init__(self, g, name):
        self.g = g; self.name = name; self.n = 0; self.nst = 0
    def lab(self, base):
        self.n += 1
        return f"{self.name}_{base}{self.n}"

def stamp(m, label=None):
    if STAMP != 1: return
    g = m.g
    g.e(f"s_memtime s[80:81]\ns_waitcnt lgkmcnt(0)\nv_writelane_b32 v{VST}, s80, {m.nst}")
    m.names = getattr(m, "names", []); m.names.append(label or str(m.nst))
    m.nst += 1

def rt_all(m, idx):
    if not STAMP: return
    g = m.g; e = g.e
    L = m.lab("rt")
    e(f"""s_cmp_lg_u32 s{S_W}, 0
    s_cbranch_scc1 {L}
    s_memrealtime s[80:81]
    s_lshl_b32 s83, s2, 2
    s_add_u32 s83, s83, {16384 + idx*1024}
    s_mov_b32 s{SRD_DBG+2}, 0x100000
    s_waitcnt lgkmcnt(0)
    v_mov_b32 v166, s80
    v_mov_b32 v164, s83
    s_mov_b64 exec, 1
    buffer_store_dword v166, v164, s[{SRD_DBG}:{SRD_DBG+3}], 0 offen
    s_mov_b64 exec, -1""")
    g.lab(L)
    m.rtn = getattr(m, "rtn", 0) + 1

def stamp_flush(m, wgs=(0,)):
    if STAMP != 1: return
    g = m.g; e = g.e
    for k, wg in enumerate(wgs):
        L = m.lab("sf")
        e(f"""s_cmp_lg_u32 s2, {wg}
        s_cbranch_scc1 {L}
        s_lshl_b32 s80, s{S_W}, 8
        s_add_u32 s80, s80, {4096 + k*4096}
        v_and_b32 v1, 63, v0
        v_lshlrev_b32 v1, 2, v1
        s_mov_b32 s{SRD_DBG+2}, 0x100000
        buffer_store_dword v{VST}, v1, s[{SRD_DBG}:{SRD_DBG+3}], s80 offen""")
        g.lab(L)

def prologue(m, nwg=256):
    g = m.g; e = g.e
    e(f"s_cmp_ge_u32 s2, {nwg}\ns_cbranch_scc1 {m.name}_done")
    if CODE_PREFETCH:
        e(f"""s_getpc_b64 s[6:7]
        {m.name}_pc0:
        v_lshlrev_b32 v1, 7, v0
        v_cmp_gt_u32 vcc, {m.name}_end-{m.name}_pc0, v1
        s_and_saveexec_b64 s[8:9], vcc
        global_load_dword v165, v1, s[6:7]
        s_mov_b64 exec, s[8:9]""")
    e(f"""s_load_dwordx16 s[{PTR['x']-4}:{PTR['x']+11}], s[0:1], 0
    s_load_dwordx4 s[{PTR['out']}:{PTR['out']+3}], s[0:1], 64
    s_load_dwordx2 s[4:5], s[0:1], 80""".replace(f"s_load_dwordx16 s[{PTR['x']-4}:{PTR['x']+11}], s[0:1], 0", "s_load_dwordx16 s[36:51], s[0:1], 0"))
    e(f"""v_lshrrev_b32 v1, 6, v0
    s_nop 0
    v_readfirstlane_b32 s{S_W}, v1""")
    if STAMP: e(f"v_mov_b32 v{VST}, 0")
    e("s_waitcnt lgkmcnt(0)")
    for nm, idx in (("x", 0), ("wqkv", 1), ("wo", 2), ("w1", 4), ("w2", 5), ("w3", 6), ("w4", 7)):
        e(f"s_mov_b64 s[{PTR[nm]}:{PTR[nm]+1}], s[{36+2*idx}:{37+2*idx}]")
    e(f"""v_mov_b32 v2, {LDS_SIG}
    v_and_b32 v3, 15, v0
    v_lshl_add_u32 v2, v3, 2, v2
    v_mov_b32 v3, 0
    ds_write_b32 v2, v3""")
    g.ws_srd(SRD_CNT, P_WS, "CNT")
    g.srd_from(SRD_DBG, PTR["dbg"], 0, 256)

def init_counters(m, extra_zero=None):
    g = m.g; e = g.e
    L = m.lab("ic")
    e(f"""s_cmp_lg_u32 s2, 0
    s_cbranch_scc1 {L}
    v_lshlrev_b32 v1, 4, v0
    v_mov_b32 v4, 0
    v_mov_b32 v5, 0
    v_mov_b32 v6, 0
    v_mov_b32 v7, 0
    buffer_store_dwordx4 v[4:7], v1, s[{SRD_CNT}:{SRD_CNT+3}], 0 offen sc1
    v_add_u32 v1, {768*16}, v1
    buffer_store_dwordx4 v[4:7], v1, s[{SRD_CNT}:{SRD_CNT+3}], 0 offen sc1""")
    if extra_zero:
        g.ws_srd(8, P_WS, extra_zero)
        e("v_lshlrev_b32 v1, 4, v0")
        for k in range(5):
            e(f"buffer_store_dwordx4 v[4:7], v1, s[8:11], 0 offen sc1\nv_add_u32 v1, {768*16}, v1")
    e(f"""s_waitcnt vmcnt(0)
    s_barrier
    s_cmp_lg_u32 s{S_W}, 0
    s_cbranch_scc1 {L}
    v_mov_b32 v4, 1
    v_mov_b32 v1, 0
    s_mov_b64 exec, 1
    buffer_store_dword v4, v1, s[{SRD_DBG}:{SRD_DBG+3}], 0 offen sc1
    s_mov_b64 exec, -1""")
    g.lab(L)

def poll(m, srd, voff_setup, nlanes, target, tmp=1, vtarget=None):
    g = m.g; e = g.e
    L = m.lab("pl")
    e(voff_setup)
    e(f"s_mov_b64 exec, {(1 << nlanes) - 1:#x}" if nlanes < 32 else "s_mov_b64 exec, -1")
    e("s_mov_b32 s82, 0")
    g.lab(L)
    tg = f"v{vtarget}" if vtarget is not None else str(target)
    e(f"""buffer_load_dword v{tmp+1}, v{tmp}, s[{srd}:{srd+3}], 0 offen sc1
    s_waitcnt vmcnt(0)
    v_cmp_gt_u32 vcc, {tg}, v{tmp+1}
    s_add_u32 s82, s82, 1
    s_cmp_gt_u32 s82, {SPIN_MAX}
    s_cbranch_scc1 {L}_x
    s_cbranch_vccz {L}_x
    {"s_sleep 1" if POLL_SLEEP else ""}
    s_branch {L}""")
    g.lab(L + "_x")
    e("s_mov_b64 exec, -1")

def arrive_global(m):
    g = m.g; e = g.e
    L = m.lab("ag")
    e(f"""s_cmp_lg_u32 s{S_W}, 0
    s_cbranch_scc1 {L}
    v_mov_b32 v5, {CNT_G * 128}
    v_mov_b32 v6, 1
    s_mov_b64 exec, 1
    buffer_atomic_add v6, v5, s[{SRD_CNT}:{SRD_CNT+3}], 0 offen sc0 sc1
    s_waitcnt vmcnt(0)
    v_readfirstlane_b32 s82, v6
    s_cmp_lg_u32 s82, 255
    s_cbranch_scc1 {L}_n
    v_mov_b32 v5, {(CNT_G + 1) * 128}
    v_mov_b32 v6, 1
    buffer_store_dword v6, v5, s[{SRD_CNT}:{SRD_CNT+3}], 0 offen sc1""")
    g.lab(L + "_n")
    e("s_mov_b64 exec, -1")
    g.lab(L)

def wait_ready(m):
    g = m.g; e = g.e
    L = m.lab("wr")
    e(f"s_cmp_lg_u32 s{S_W}, 0\ns_cbranch_scc1 {L}")
    poll(m, SRD_DBG, "v_mov_b32 v1, 0", 1, 1)
    g.lab(L)

def signal(m, scnt):
    g = m.g; e = g.e
    L = m.lab("sg")
    e(f"""s_waitcnt vmcnt(0)
    s_barrier
    s_cmp_lg_u32 s{S_W}, 0
    s_cbranch_scc1 {L}
    s_lshl_b32 s82, s{scnt}, 7
    v_mov_b32 v1, s82
    v_mov_b32 v2, 1
    s_mov_b64 exec, 1
    buffer_atomic_add v2, v1, s[{SRD_CNT}:{SRD_CNT+3}], 0 offen sc1
    s_mov_b64 exec, -1""")
    g.lab(L)

def wait_cnt(m, scnt, n, target, lo=None, hi=None, extra=None, extra_target=32):
    g = m.g; e = g.e
    L = m.lab("wc")
    e(f"s_cmp_lg_u32 s{S_W}, 0\ns_cbranch_scc1 {L}")
    setup = f"v_and_b32 v1, 63, v0\nv_add_u32 v2, s{scnt}, v1"
    if lo is not None:
        setup += f"\nv_max_i32 v2, {lo}, v2\nv_min_i32 v2, {hi}, v2"
    nl = n
    if extra is not None:
        setup += f"\nv_cmp_eq_u32 vcc, {n}, v1\nv_mov_b32 v1, s{extra}\nv_mov_b32 v163, {target}\nv_cndmask_b32 v2, v2, v1, vcc\nv_cndmask_b32 v163, v163, {extra_target}, vcc"
        nl = n + 1
    setup += "\nv_lshlrev_b32 v1, 7, v2"
    poll(m, SRD_CNT, setup, nl, target, vtarget=(163 if extra is not None else None))
    g.lab(L)
    e("s_barrier")

W_PITCH = 160
LDS_W = 0
LDS_RED = 97280
RED_SZ = 12 * 5 * 1024
LDS_TAB = LDS_RED + RED_SZ
LDS_TOTAL = 163840

def midmap(g):
    g.e("""s_and_b32 s20, s2, 7
    s_lshr_b32 s21, s2, 3
    s_lshl_b32 s20, s20, 2
    s_and_b32 s23, s21, 3
    s_add_u32 s20, s20, s23
    s_lshr_b32 s21, s21, 2""")

def efmap(g):
    R = MAPR; J = 32 // R
    lr = R.bit_length() - 1; lj = J.bit_length() - 1
    njg = 8 // J; lnjg = njg.bit_length() - 1
    g.e(f"""s_and_b32 s21, s2, 7
    s_lshr_b32 s23, s2, 3
    s_lshr_b32 s20, s21, {lnjg}
    s_lshl_b32 s20, s20, {lr}
    s_and_b32 s19, s23, {R-1}
    s_add_u32 s20, s20, s19
    s_and_b32 s21, s21, {njg-1}
    s_lshl_b32 s21, s21, {lj}
    s_lshr_b32 s23, s23, {lr}
    s_add_u32 s21, s21, s23""")

def lanes(g):
    g.e("""v_and_b32 v1, 63, v0
    v_lshlrev_b32 v2, 4, v1
    v_and_b32 v3, 15, v1
    v_lshrrev_b32 v4, 4, v1""")

def xsum_g(g, v, t):
    g.e(f"""v_mov_b32 v{t}, v{v}
    s_nop 1
    v_permlane16_swap_b32 v{t}, v{v}
    s_nop 1
    v_add_f32 v{v}, v{v}, v{t}
    v_mov_b32 v{t}, v{v}
    s_nop 1
    v_permlane32_swap_b32 v{t}, v{v}
    s_nop 1
    v_add_f32 v{v}, v{v}, v{t}""")

def ss_load(g, dst, srd, srow, tmp):
    g.e(f"""v_add_u32 v{tmp}, s{srow}, v3
    v_lshlrev_b32 v{tmp}, 7, v{tmp}
    v_lshl_add_u32 v{tmp}, v4, 5, v{tmp}
    v_cmp_eq_u32 vcc, 3, v4
    v_mov_b32 v{tmp+1}, 0x7fffff00
    s_nop 0
    v_cndmask_b32 v{tmp}, v{tmp}, v{tmp+1}, vcc
    buffer_load_dwordx4 v[{dst}:{dst+3}], v{tmp}, s[{srd}:{srd+3}], 0 offen sc1
    buffer_load_dwordx4 v[{dst+4}:{dst+7}], v{tmp}, s[{srd}:{srd+3}], 0 offen offset:16 sc1""")

def ss_reduce(g, a, t):
    for k in range(1, 8): g.e(f"v_add_f32 v{a}, v{a}, v{a+k}")
    xsum_g(g, a, t)

def wtile_dma_raw(g, srd, s_src, tmp, mask9=False):
    e = g.e
    e(f"s_lshl_b32 s40, s{S_W}, 9")
    e(f"s_lshl_b32 s41, s{S_W}, 13")
    for m_ in range(8):
        e(f"v_add_u32 v{tmp}, s40, v1")
        if m_: e(f"v_add_u32 v{tmp}, {64*m_}, v{tmp}")
        e(f"""v_mul_u32_u24 v{tmp+1}, 6554, v{tmp}
        v_lshrrev_b32 v{tmp+1}, 16, v{tmp+1}
        v_mul_u32_u24 v{tmp+2}, 10, v{tmp+1}
        v_sub_u32 v{tmp}, v{tmp}, v{tmp+2}
        v_mul_u32_u24 v{tmp+1}, 1152, v{tmp+1}
        v_lshl_add_u32 v{tmp+1}, v{tmp}, 4, v{tmp+1}
        s_add_u32 m0, s41, {LDS_W + m_*1024}""")
        if mask9:
            e(f"v_cmp_ne_u32 vcc, 9, v{tmp}\ns_nop 0\ns_mov_b64 exec, vcc")
        else:
            e("s_nop 0")
        e(f"buffer_load_dwordx4 v{tmp+1}, s[{srd}:{srd+3}], s{s_src} offen lds")
        if mask9: e("s_mov_b64 exec, -1")

def gemm_stage(g, XF, AF, ACC, vtr, nks=6):
    e = g.e
    def rd(i, p):
        for nt in range(5):
            a = AF + p*20 + nt*4
            e(f"ds_read_b64_tr_b16 v[{a}:{a+1}], v{vtr} offset:{i*32*W_PITCH + nt*32}")
            e(f"ds_read_b64_tr_b16 v[{a+2}:{a+3}], v{vtr} offset:{i*32*W_PITCH + nt*32 + 8*W_PITCH}")
    rd(0, 0)
    for i in range(nks):
        p = i & 1
        if i + 1 < nks:
            rd(i + 1, 1 - p)
            e("s_waitcnt lgkmcnt(10)")
        else:
            e("s_waitcnt lgkmcnt(0)")
        for nt in range(5):
            a = AF + p*20 + nt*4; c = ACC + nt*4
            src = f"v[{c}:{c+3}]" if i else "0"
            e(f"v_mfma_f32_16x16x32_bf16 v[{c}:{c+3}], v[{a}:{a+3}], v[{XF+4*i}:{XF+4*i+3}], {src}")

def tr_base(g, v, tmp, s_ks0):
    g.e(f"""v_lshrrev_b32 v{v}, 5, v1
    v_lshlrev_b32 v{v}, 4, v{v}
    v_bfe_u32 v{tmp}, v1, 4, 1
    v_lshl_add_u32 v{v}, v{tmp}, 2, v{v}
    v_bfe_u32 v{tmp}, v1, 2, 2
    v_add_u32 v{v}, v{v}, v{tmp}
    v_mul_u32_u24 v{v}, {W_PITCH}, v{v}
    v_and_b32 v{tmp}, 3, v1
    v_lshl_add_u32 v{v}, v{tmp}, 3, v{v}
    s_mul_i32 s31, s{s_ks0}, {32*W_PITCH}
    v_add_u32 v{v}, s31, v{v}""")

def img_dma(g, region, nbytes_per_ng):
    e = g.e
    N = nbytes_per_ng // 1024
    g.ws_srd(12, P_WS, region)
    e(f"""s_mul_i32 s40, s21, {nbytes_per_ng}
    s_lshl_b32 s41, s{S_W}, 10""")
    for m_ in range(8):
        if 12*m_ + 11 >= N:
            e(f"""s_add_u32 s42, s41, {12*m_*1024}
            s_cmp_ge_u32 s42, {N*1024}
            s_cselect_b32 s43, {12*1024}, 0
            s_sub_u32 s42, s42, s43""")
        else:
            e(f"s_add_u32 s42, s41, {12*m_*1024}")
        e(f"""s_mov_b32 m0, s42
        s_add_u32 s43, s40, s42
        buffer_load_dwordx4 v2, s[12:15], s43 offen lds""")

def next_w_dma(m, region, nbytes_per_ng, lo=0, hi=24):
    g = m.g; e = g.e
    L = m.lab("nw")
    N = nbytes_per_ng // 1024
    e(f"s_cmp_lt_u32 s{S_W}, 8\ns_cbranch_scc1 {L}")
    g.ws_srd(12, P_WS, region)
    e(f"""s_mul_i32 s40, s21, {nbytes_per_ng}
    s_sub_u32 s41, s{S_W}, 8
    s_lshl_b32 s41, s41, 10""")
    for m_ in range(lo, hi):
        if 4*m_ >= N:
            e(f"s_add_u32 s42, s41, {4*(m_-2)*1024}")
        elif 4*m_ + 3 >= N:
            e(f"""s_add_u32 s42, s41, {4*m_*1024}
            s_cmp_ge_u32 s42, {N*1024}
            s_cselect_b32 s43, {4*1024}, 0
            s_sub_u32 s42, s42, s43""")
        else:
            e(f"s_add_u32 s42, s41, {4*m_*1024}")
        e(f"""s_mov_b32 m0, s42
        s_add_u32 s43, s40, s42
        buffer_load_dwordx4 v2, s[12:15], s43 offen lds""")
    g.lab(L)

def unit_off(g, vout, tmp):
    g.e(f"""v_and_b32 v{tmp}, 1, v4
    v_lshlrev_b32 v{vout}, 9, v{tmp}
    v_lshrrev_b32 v{tmp}, 1, v4
    v_lshl_add_u32 v{vout}, v{tmp}, 8, v{vout}
    v_lshl_add_u32 v{vout}, v3, 4, v{vout}""")

def swap_pair(g, a):
    g.e(f"s_nop 1\nv_permlane16_swap_b32 v{a}, v{a+2}\nv_permlane16_swap_b32 v{a+1}, v{a+3}\ns_nop 1")

def red_write(g, ACC, tmp):
    e = g.e
    e(f"s_mul_i32 s40, s{S_W}, 5120")
    e(f"s_add_u32 s40, s40, {LDS_RED}")
    e(f"v_add_u32 v{tmp}, s40, v2")
    e("s_nop 7")
    for nt in range(5):
        e(f"ds_write_b128 v{tmp}, v[{ACC+4*nt}:{ACC+4*nt+3}] offset:{nt*1024}")

def red_addr(g, v):
    g.e(f"""s_mul_i32 s32, s24, 5120
    s_lshl_b32 s33, s25, 11
    s_add_u32 s33, s32, s33
    s_add_u32 s33, s33, {LDS_RED}
    v_add_u32 v{v}, s33, v2""")

def red_read(g, dst, vaddr, nt_off):
    for k in range(3):
        g.e(f"ds_read_b128 v[{dst+4*k}:{dst+4*k+3}], v{vaddr} offset:{k*4*5120 + nt_off}")

def fm2_tile_off(g, vout, s_q0, tmp):
    g.e(f"""v_add_u32 v{tmp}, s{s_q0}, v4
    v_lshrrev_b32 v{vout}, 3, v{tmp}
    v_lshlrev_b32 v{vout}, 10, v{vout}
    v_and_b32 v{tmp+1}, 3, v{tmp}
    v_lshl_add_u32 v{vout}, v{tmp+1}, 8, v{vout}
    v_bfe_u32 v{tmp+1}, v{tmp}, 2, 1
    v_lshl_add_u32 v{vout}, v{tmp+1}, 3, v{vout}
    v_lshl_add_u32 v{vout}, v3, 4, v{vout}""")

def unpack4(g, src, dst):
    g.e(f"""v_lshlrev_b32 v{dst}, 16, v{src}
    v_and_b32 v{dst+1}, 0xffff0000, v{src}
    v_lshlrev_b32 v{dst+2}, 16, v{src+1}
    v_and_b32 v{dst+3}, 0xffff0000, v{src+1}""")

def gelu4(g, c, t, k):
    e = g.e
    for r in range(4): e(f"v_mul_f32 v{t+r}, v{c+r}, v{c+r}")
    for r in range(4): e(f"v_fma_f32 v{t+r}, v{t+r}, v{k+1}, v{k}")
    for r in range(4): e(f"v_mul_f32 v{t+r}, v{t+r}, v{c+r}")
    for r in range(4): e(f"v_exp_f32 v{t+r}, v{t+r}")
    for r in range(4): e(f"v_fma_f32 v{t+r}, v{t+r}, v{k+2}, v{k+2}")
    for r in range(4): e(f"v_rcp_f32 v{t+r}, v{t+r}")
    for r in range(4): e(f"v_mul_f32 v{t+r}, v{t+r}, v{c+r}")
    e(f"v_cvt_pk_bf16_f32 v{t}, v{t}, v{t+1}")
    e(f"v_cvt_pk_bf16_f32 v{t+1}, v{t+2}, v{t+3}")

def gelu4p(g, c, t, k):
    e = g.e
    for r in (0, 2): e(f"v_pk_mul_f32 v[{t+r}:{t+r+1}], v[{c+r}:{c+r+1}], v[{c+r}:{c+r+1}]")
    for r in (0, 2): e(f"v_pk_fma_f32 v[{t+r}:{t+r+1}], v[{t+r}:{t+r+1}], v[{k}:{k+1}], v[{k}:{k+1}] op_sel:[0,1,0] op_sel_hi:[1,1,0]")
    for r in (0, 2): e(f"v_pk_mul_f32 v[{t+r}:{t+r+1}], v[{t+r}:{t+r+1}], v[{c+r}:{c+r+1}]")
    for r in range(4): e(f"v_exp_f32 v{t+r}, v{t+r}")
    for r in (0, 2): e(f"v_pk_fma_f32 v[{t+r}:{t+r+1}], v[{t+r}:{t+r+1}], v[{k+2}:{k+3}], v[{k+2}:{k+3}] op_sel:[0,0,0] op_sel_hi:[1,0,0]")
    for r in range(4): e(f"v_rcp_f32 v{t+r}, v{t+r}")
    for r in (0, 2): e(f"v_pk_mul_f32 v[{t+r}:{t+r+1}], v[{t+r}:{t+r+1}], v[{c+r}:{c+r+1}]")
    e(f"v_cvt_pk_bf16_f32 v{t}, v{t}, v{t+1}")
    e(f"v_cvt_pk_bf16_f32 v{t+1}, v{t+2}, v{t+3}")

def mid_ids(g):
    midmap(g)
    g.e(f"""s_and_b32 s24, s{S_W}, 3
    s_lshr_b32 s25, s{S_W}, 2
    s_lshl_b32 s26, s20, 2
    s_add_u32 s26, s26, s24
    s_lshl_b32 s30, s26, 4""")


IMG_SZ = 576 * 160
IMGO_SZ = 608 * 160
LDS_KV = LDS_RED

def own_mask(g, name):
    L = name + "_om"
    g.e(f"""s_cmp_eq_u32 s25, 2
    s_cbranch_scc0 {L}
    s_mov_b64 exec, 0xffff""")
    g.lab(L)

def sum3(g, a):
    for r in range(4): g.e(f"v_add_f32 v{a+r}, v{a+r}, v{a+4+r}")
    for r in range(4): g.e(f"v_add_f32 v{a+r}, v{a+r}, v{a+8+r}")

def mean_extra_read(g, dst, tmp):
    g.e(f"""s_mul_i32 s32, s24, 5120
    s_add_u32 s32, s32, {LDS_RED + 4*1024 + 32*16}
    v_lshlrev_b32 v{tmp}, 4, v3
    v_add_u32 v{tmp}, s32, v{tmp}""")
    for k in range(3):
        g.e(f"ds_read_b64 v[{dst+2*k}:{dst+2*k+1}], v{tmp} offset:{k*4*5120}")

def mean_extra_sum(g, m1):
    g.e(f"""v_add_f32 v{m1}, v{m1}, v{m1+1}
    v_add_f32 v{m1+2}, v{m1+2}, v{m1+3}
    v_add_f32 v{m1+4}, v{m1+4}, v{m1+5}
    v_add_f32 v{m1}, v{m1}, v{m1+2}
    v_add_f32 v{m1}, v{m1}, v{m1+4}""")

def ss_store(g, v, srd, tmp):
    xsum_g(g, v, tmp)
    g.e(f"""s_mul_i32 s33, s21, 3
    s_add_u32 s33, s33, s25
    s_lshl_b32 s33, s33, 2
    v_add_u32 v{tmp}, s30, v3
    v_lshlrev_b32 v{tmp}, 7, v{tmp}
    v_add_u32 v{tmp}, s33, v{tmp}
    s_mov_b64 exec, 0xffff
    buffer_store_dword v{v}, v{tmp}, s[{srd}:{srd+3}], 0 offen sc1
    s_mov_b64 exec, -1""")

def tile_soff(g, s):
    g.e(f"""s_mul_i32 s{s}, s26, 72
    s_mul_i32 s33, s21, 9
    s_add_u32 s{s}, s{s}, s33
    s_lshl_b32 s33, s25, 2
    s_add_u32 s{s}, s{s}, s33
    s_lshl_b32 s{s}, s{s}, 8""")

LDS_SIG = 163776
def finish_signal(m, cnt_base, slot, extra=None, dma=None):
    g = m.g; e = g.e
    L = m.lab("sg")
    if dma:
        next_w_dma(m, *dma, lo=0, hi=NPRE)
        e(f"""s_cmp_lt_u32 s{S_W}, 8
        s_cbranch_scc1 {L}_v0
        s_waitcnt vmcnt({NPRE})
        s_branch {L}_v1""")
        g.lab(f"{L}_v0")
        e("s_waitcnt vmcnt(0)")
        g.lab(f"{L}_v1")
    else:
        e("s_waitcnt vmcnt(0)")
    e(f"""s_barrier
    s_cmp_lg_u32 s{S_W}, 0
    s_cbranch_scc1 {L}
    s_add_u32 s82, s20, {cnt_base}
    s_lshl_b32 s82, s82, 7
    v_mov_b32 v110, s82
    v_mov_b32 v111, 1
    s_mov_b64 exec, 1
    buffer_atomic_add v111, v110, s[{SRD_CNT}:{SRD_CNT+3}], 0 offen sc1""")
    if extra is not None:
        e(f"""s_cmp_ge_u32 s2, 192
        s_cbranch_scc1 {L}
        s_and_b32 s82, s2, 7
        s_add_u32 s82, s82, 144
        s_lshl_b32 s82, s82, 7
        v_mov_b32 v110, s82
        buffer_atomic_add v111, v110, s[{SRD_CNT}:{SRD_CNT+3}], 0 offen sc1""")
    g.lab(L)
    e("s_mov_b64 exec, -1")
    if dma:
        next_w_dma(m, *dma, lo=NPRE, hi=24)

def wp_touch(m, part, vdst=162):
    g = m.g; e = g.e
    L = m.lab("wt")
    R = MAPR
    shr = 55296 // R
    nl = (shr + 127) // 128
    spw = 64 // nl
    nw = (12 + spw - 1) // spw
    e(f"s_cmp_ge_u32 s{S_W}, {nw}\ns_cbranch_scc1 {L}")
    efmap(g)
    g.ws_srd(8, P_WS, "WP")
    e(f"""v_and_b32 v120, 63, v0
    v_mul_u32_u24 v121, {65536 // nl + 1}, v120
    v_lshrrev_b32 v121, 16, v121
    v_mul_u32_u24 v122, {nl}, v121
    v_sub_u32 v122, v120, v122                   ; line
    s_mul_i32 s23, s{S_W}, {spw}
    v_add_u32 v121, s23, v121                  ; stream 0..11(+)
    v_mul_u32_u24 v121, {WP_WAVE}, v121
    v_lshl_add_u32 v121, v122, 7, v121
    s_mul_i32 s23, s21, {12*WP_WAVE}
    s_mul_i32 s19, s19, {shr}
    s_add_u32 s23, s23, s19
    s_add_u32 s23, s23, {part*55296}
    v_cmp_gt_u32 vcc, {spw*nl}, v120
    s_and_saveexec_b64 s[18:19], vcc
    buffer_load_dword v{vdst}, v121, s[8:11], s23 offen
    s_mov_b64 exec, -1""")
    g.lab(L)

CNT_IMG = 152
LDS_KB = LDS_RED
def phase_b(m, first=False, prefetch_next=True, wp_signal=False):
    g = m.g; e = g.e; name = m.lab("B")
    PQF, KA, D0, BFR, LFT, AF, ACC, C1R = 8, 56, 80, 96, 100, 104, 124, 144
    XR, MX = 148, 152
    VK0, VK1, VTR = 5, 153, 6
    KVR = 56
    lanes(g); mid_ids(g)
    if not first:
        e(f"s_mov_b32 s33, {CNT_IMG}")
        wait_cnt(m, 33, 8, 8)
        lanes(g)
    img_dma(g, "IMGO", IMGO_SZ)
    if IMG_TOUCH:
        Lt = m.lab("it")
        e(f"""s_cmp_ge_u32 s{S_W}, 6
        s_cbranch_scc1 {Lt}
        s_and_b32 s40, s20, 3
        s_mul_i32 s40, s40, {180*128}
        s_mul_i32 s41, s21, {IMG_SZ}
        s_add_u32 s40, s40, s41
        s_cmp_ge_u32 s{S_W}, 3
        s_cselect_b32 s41, 3, 0
        s_sub_u32 s41, s{S_W}, s41
        s_lshl_b32 s41, s41, 13
        s_add_u32 s40, s40, s41
        v_lshlrev_b32 v161, 7, v1
        s_cmp_ge_u32 s{S_W}, 3
        s_cbranch_scc1 {Lt}_2""")
        g.ws_srd(12, P_WS, "IMG1")
        e(f"buffer_load_dword v162, v161, s[12:15], s40 offen\ns_branch {Lt}")
        g.lab(f"{Lt}_2")
        g.ws_srd(12, P_WS, "IMG2")
        e("buffer_load_dword v162, v161, s[12:15], s40 offen")
        g.lab(Lt)
    unit_off(g, 7, 110)
    e(f"""v_and_b32 v110, 1, v4
    v_lshlrev_b32 v111, 5, v110
    v_lshrrev_b32 v110, 1, v4
    v_lshl_add_u32 v111, v110, 4, v111
    v_add_u32 v110, s30, v3
    v_mul_u32_u24 v112, 1152, v110
    v_add_u32 v112, v112, v111
    s_mul_i32 s35, s21, 144
    s_lshl_b32 s33, s25, 6
    s_add_u32 s35, s35, s33""")
    g.srd_from(16, PTR["x"], 0, FMSZ)
    e(f"buffer_load_dwordx4 v[{XR}:{XR+3}], v112, s[16:19], s35 offen")
    e("""s_mov_b32 s27, 0
    s_mov_b32 s28, 0
    s_cmp_eq_u32 s25, 1
    s_cselect_b32 s27, 12, s27
    s_cselect_b32 s28, 7, s28
    s_cmp_eq_u32 s25, 2
    s_cselect_b32 s27, 22, s27
    s_cselect_b32 s28, 13, s28""")
    e(f"""v_mul_u32_u24 v{VK0}, 48, v3
    v_lshl_add_u32 v{VK0}, v4, 4, v{VK0}
    v_mov_b32 v110, {19*48}
    v_cmp_gt_u32 vcc, 3, v4
    s_mov_b64 s[36:37], vcc
    s_mul_i32 s38, s27, 960
    v_cndmask_b32 v{VK0}, v110, v{VK0}, vcc
    s_add_u32 s38, s38, {LDS_KB}
    v_add_u32 v{VK0}, s38, v{VK0}
    v_and_b32 v111, 3, v3
    v_lshrrev_b32 v112, 2, v3""")
    for gh in range(4):
        v = VK1 + gh
        e(f"""v_mov_b32 v{v}, 19
        v_add_u32 v113, 16, v111
        v_cmp_eq_u32 vcc, {gh}, v112
        s_mov_b64 s[40:41], vcc
        v_cmp_gt_u32 vcc, 2, v111
        s_and_b64 vcc, vcc, s[40:41]
        s_nop 1
        v_cndmask_b32 v{v}, v{v}, v113, vcc
        v_cmp_eq_u32 vcc, 2, v111
        s_nop 1
        v_cndmask_b32 v{v}, v{v}, 18, vcc
        v_mul_u32_u24 v{v}, 48, v{v}
        v_lshl_add_u32 v{v}, v4, 4, v{v}
        v_cndmask_b32 v{v}, v110, v{v}, s[36:37]
        v_add_u32 v{v}, s38, v{v}""")
    tr_base(g, VTR, 110, 28)
    e(f"""v_mov_b32 v{C1R}, 0
    v_mov_b32 v{C1R+1}, 0
    v_mov_b32 v{C1R+2}, {hx(1e-6)}
    v_mov_b32 v{C1R+3}, 0""")
    for r in range(4): e(f"v_mov_b32 v{LFT+r}, 0")
    for r in range(20): e(f"v_mov_b32 v{ACC+r}, 0")
    g.ws_srd(44, P_WS, "HC"); g.ws_srd(48, P_WS, "MEANH"); g.ws_srd(52, P_WS, "SSH")
    g.ws_srd(8, P_WS, "KVT"); g.ws_srd(16, P_WS, "PQP")
    e(f"""s_lshl_b32 s34, s26, 5
    s_add_u32 s34, s34, s27
    s_mul_i32 s34, s34, 768
    v_lshlrev_b32 v157, 4, v0
    v_lshlrev_b32 v158, 3, v0
    v_add_u32 v158, {LDS_KB}, v158""")
    if not first:
        e(f"s_mov_b32 s33, {CNT_G + 1}")
        e("v_mov_b32 v159, v1\nv_mov_b32 v160, v2")
        wait_cnt(m, 33, 1, 1)
        e("v_mov_b32 v1, v159\nv_mov_b32 v2, v160")
        stamp(m, "B:bar")
        rt_all(m, 2)
    for k in range(5):
        e(f"buffer_load_dwordx4 v[{KVR+4*k}:{KVR+4*k+3}], v157, s[8:11], 0 offen sc1")
        if k < 4: e(f"v_add_u32 v157, {768*16}, v157")
    e("s_barrier")
    for i in range(12):
        if i in (5, 10): e("s_add_u32 s34, s34, 3840")
        e(f"buffer_load_dwordx4 v[{PQF+4*i}:{PQF+4*i+3}], v2, s[16:19], s34 offen offset:{(i%5)*768} sc1")
    g.ws_srd(16, P_WS, "XST")
    e(f"v_add_u32 v110, s30, v3\nv_lshlrev_b32 v110, 2, v110\nbuffer_load_dword v{MX}, v110, s[16:19], 0 offen sc1")
    for k in range(5):
        e(f"s_waitcnt vmcnt({13 + 4 - k})")
        e(f"v_cvt_pk_bf16_f32 v{KVR+4*k}, v{KVR+4*k}, v{KVR+4*k+1}")
        e(f"v_cvt_pk_bf16_f32 v{KVR+4*k+1}, v{KVR+4*k+2}, v{KVR+4*k+3}")
        e(f"ds_write_b64 v158, v[{KVR+4*k}:{KVR+4*k+1}] offset:{k*768*8}")
    e("s_waitcnt lgkmcnt(0)\ns_barrier")
    stamp(m, "B:loaded")
    q = []
    def lds(tag, txt): e(txt); q.append(tag)
    def need(tag):
        idx = max(i for i, t in enumerate(q) if t == tag)
        n = len(q) - 1 - idx
        e(f"s_waitcnt lgkmcnt({min(n, 15)})")
        del q[:idx + 1 if n <= 15 else max(0, len(q) - 15)]
    def kread(hl):
        a = KA + 8*(hl % 3)
        lds(("k", hl), f"ds_read_b128 v[{a}:{a+3}], v{VK0} offset:{hl*960}")
        lds(("k", hl), f"ds_read_b128 v[{a+4}:{a+7}], v{VK1 + (hl & 3)} offset:{hl*960}")
    def wread(i):
        for nt in range(5):
            a = AF + nt*4
            lds(("w", i), f"ds_read_b64_tr_b16 v[{a}:{a+1}], v{VTR} offset:{i*32*W_PITCH + nt*32}")
            lds(("w", i), f"ds_read_b64_tr_b16 v[{a+2}:{a+3}], v{VTR} offset:{i*32*W_PITCH + nt*32 + 8*W_PITCH}")
    def wmfma(bf):
        for nt in range(5):
            a = AF + nt*4; c = ACC + nt*4
            e(f"v_mfma_f32_16x16x32_bf16 v[{c}:{c+3}], v[{a}:{a+3}], v[{bf}:{bf+3}], v[{c}:{c+3}]")
    def hm(hl):
        a = KA + 8*(hl % 3); dd = D0 + 8*(hl & 1); p = PQF + 4*hl
        need(("k", hl))
        e(f"s_waitcnt vmcnt({12 - hl})")
        e(f"v_mfma_f32_16x16x32_bf16 v[{dd}:{dd+3}], v[{a}:{a+3}], v[{p}:{p+3}], 0")
        e(f"v_mfma_f32_16x16x32_bf16 v[{dd+4}:{dd+7}], v[{a+4}:{a+7}], v[{p}:{p+3}], v[{C1R}:{C1R+3}]")
    def post(hl):
        dd = D0 + 8*(hl & 1); slot = hl & 1
        e(f"v_rcp_f32 v{dd+6}, v{dd+6}")
        e("s_nop 0")
        for r in (0, 2, 4): e(f"v_pk_mul_f32 v[{dd+r}:{dd+r+1}], v[{dd+r}:{dd+r+1}], v[{dd+6}:{dd+7}] op_sel_hi:[1,0]")
        e(f"v_cvt_pk_bf16_f32 v{BFR+2*slot}, v{dd}, v{dd+1}")
        e(f"v_cvt_pk_bf16_f32 v{BFR+2*slot+1}, v{dd+2}, v{dd+3}")
        e(f"v_cvt_pk_bf16_f32 v{dd+4}, v{dd+4}, v{dd+5}")
        e(f"v_or_b32 v{LFT + (hl >> 2)}, v{LFT + (hl >> 2)}, v{dd+4}")
    def pair(i, nh):
        h0, h1 = 2*i, 2*i + 1
        hm(h0)
        if h0 + 3 < nh: pass
        hm(h1)
        if h0 + 3 < nh + 1 and h0 + 3 <= nh - 1 + 0: pass
        if h0 + 2 < nh: kread(h0 + 2)
        e("s_nop 3")
        post(h0)
        if h0 + 3 < nh: kread(h0 + 3)
        e("s_nop 1")
        post(h1)
        need(("w", i))
        e("s_nop 0")
        wmfma(BFR)
    def run(nh, tag):
        kread(0); kread(1); wread(0)
        for i in range(nh // 2):
            pair(i, nh)
            wread(i + 1)
        need(("w", nh // 2))
        wmfma(LFT)
    e(f"s_cmp_lg_u32 s25, 0\ns_cbranch_scc1 {name}_r10")
    run(12, "a")
    e(f"s_branch {name}_rj")
    g.lab(f"{name}_r10")
    q.clear()
    run(10, "b")
    g.lab(f"{name}_rj")
    q.clear()
    e("s_waitcnt vmcnt(0) lgkmcnt(0)")
    e("s_barrier")
    stamp(m, "B:gemm")
    red_write(g, ACC, 5)
    e("s_waitcnt lgkmcnt(0)\ns_barrier")
    stamp(m, "B:red")
    red_addr(g, 5)
    mean_extra_read(g, ACC, 110)
    red_read(g, AF, 5, 0)
    red_read(g, 56, 5, 1024)
    swap_pair(g, XR)
    unpack4(g, XR, 72); unpack4(g, XR + 2, 76)
    e("s_waitcnt lgkmcnt(6)")
    mean_extra_sum(g, ACC)
    e(f"v_add_f32 v{ACC}, v{ACC}, v{MX}            ; mean_h")
    e("s_waitcnt lgkmcnt(0)")
    sum3(g, AF); sum3(g, 56)
    e(f"v_mov_b32 v{ACC+6}, 0")
    for (a_, x) in ((AF, 72), (56, 76)):
        for r in range(4): e(f"v_add_f32 v{a_+r}, v{a_+r}, v{x+r}")
        for r in range(4): e(f"v_sub_f32 v{a_+r}, v{a_+r}, v{ACC}")
    e(f"""s_cmp_eq_u32 s25, 2
    s_cbranch_scc1 {name}_q2""")
    for a_ in (AF, 56):
        for r in range(4): e(f"v_fmac_f32 v{ACC+6}, v{a_+r}, v{a_+r}")
    e(f"s_branch {name}_q3")
    g.lab(f"{name}_q2")
    e("s_mov_b64 exec, 0xffffffff")
    for r in range(4): e(f"v_fmac_f32 v{ACC+6}, v{AF+r}, v{AF+r}")
    e("s_mov_b64 exec, -1")
    g.lab(f"{name}_q3")
    e(f"""v_cvt_pk_bf16_f32 v80, v{AF}, v{AF+1}
    v_cvt_pk_bf16_f32 v81, v{AF+2}, v{AF+3}
    v_cvt_pk_bf16_f32 v82, v56, v57
    v_cvt_pk_bf16_f32 v83, v58, v59""")
    swap_pair(g, 80)
    tile_soff(g, 36)
    own_mask(g, name)
    stamp(m, "B:st")
    e("buffer_store_dwordx4 v[80:83], v7, s[44:47], s36 offen sc1")
    e("s_mov_b64 exec, -1")
    ss_store(g, ACC + 6, 52, 110)
    L = name + "_nm"
    e(f"""s_or_b32 s33, s21, s25
    s_cmp_lg_u32 s33, 0
    s_cbranch_scc1 {L}
    v_add_u32 v110, s30, v3
    v_lshlrev_b32 v110, 2, v110
    s_mov_b64 exec, 0xffff
    buffer_store_dword v{ACC}, v110, s[48:51], 0 offen sc1
    s_mov_b64 exec, -1""")
    g.lab(L)
    n = 0
    stamp(m, "B:st2")
    finish_signal(m, CNT_B, 0, extra=(1 if wp_signal else None), dma=(('IMG1', IMG_SZ) if prefetch_next else None))
    stamp(m, "B:sig")
    rt_all(m, 3)

def phase_c(m, first=False, prefetch_next=True):
    g = m.g; e = g.e; name = m.lab("C")
    XF, AF, ACC, SS, K = 8, 32, 72, 92, 100
    lanes(g); mid_ids(g)
    if first: img_dma(g, "IMG1", IMG_SZ)
    else:
        e(f"s_add_u32 s33, s20, {CNT_B}")
        e("s_waitcnt vmcnt(0)")
        wait_cnt(m, 33, 1, 8)
        lanes(g)
    stamp(m, "C:go")
    e(f"""s_mul_i32 s27, s26, 18
    s_mul_i32 s28, s25, 6
    s_add_u32 s27, s27, s28
    s_lshl_b32 s27, s27, 10""")
    g.ws_srd(8, P_WS, "HC")
    for i in range(6):
        if i == 4: e("s_add_u32 s27, s27, 4096")
        e(f"buffer_load_dwordx4 v[{XF+4*i}:{XF+4*i+3}], v2, s[8:11], s27 offen offset:{(i%4)*1024} sc1")
    g.ws_srd(16, P_WS, "SSH")
    ss_load(g, SS, 16, 30, 5)
    g.ws_srd(44, P_WS, "HH")
    tr_base(g, 5, 6, 28)
    e("s_waitcnt vmcnt(2)")
    stamp(m, "C:loaded")
    gemm_stage(g, XF, AF, ACC, 5)
    e("s_waitcnt vmcnt(0)")
    ss_reduce(g, SS, 6)
    e(f"""v_mov_b32 v{SS+1}, {hx(1e-5)}
    v_fmac_f32 v{SS+1}, {hx(1.0/576)}, v{SS}
    v_rsq_f32 v{SS+2}, v{SS+1}
    v_mul_f32 v{SS+3}, {hx(1.0/576)}, v{SS}
    v_mul_f32 v{SS+3}, v{SS+3}, v{SS+2}
    v_mul_f32 v{SS+3}, v{SS+3}, v{SS+2}
    v_add_f32 v{SS+3}, {hx(1e-5)}, v{SS+3}
    v_mul_f32 v{SS+4}, v{SS+1}, v{SS+3}
    v_rsq_f32 v{SS+5}, v{SS+4}
    s_nop 0
    v_mul_f32 v{K+2}, v{SS+4}, v{SS+5}
    v_mul_f32 v{K}, {hx(-C1)}, v{SS+5}
    v_mul_f32 v{SS+6}, v{SS+5}, v{SS+5}
    v_mul_f32 v{SS+6}, v{SS+6}, v{SS+5}
    v_mul_f32 v{K+1}, {hx(-C2)}, v{SS+6}""")
    red_write(g, ACC, 5)
    e("s_waitcnt lgkmcnt(0)\ns_barrier")
    stamp(m, "C:red")
    red_addr(g, 5)
    red_read(g, AF, 5, 0)
    red_read(g, AF + 12, 5, 1024)
    unit_off(g, 7, 6)
    tile_soff(g, 36)
    e("s_waitcnt lgkmcnt(3)")
    sum3(g, AF)
    gelu4(g, AF, 104, K)
    e("s_waitcnt lgkmcnt(0)")
    sum3(g, AF + 12)
    gelu4(g, AF + 12, 108, K)
    e("v_mov_b32 v106, v108\nv_mov_b32 v107, v109")
    swap_pair(g, 104)
    own_mask(g, name)
    e("buffer_store_dwordx4 v[104:107], v7, s[44:47], s36 offen sc1")
    e("s_mov_b64 exec, -1")
    n = 0
    finish_signal(m, CNT_C, 1, dma=(('IMG2', IMG_SZ) if prefetch_next else None))

    stamp(m, "C:sig")
    rt_all(m, 4)

def phase_d(m, check_wp=False):
    g = m.g; e = g.e; name = m.lab("D")
    XF, AF, ACC, SS, HCR, MH = 8, 32, 72, 92, 100, 104
    lanes(g); mid_ids(g)
    g.ws_srd(16, P_WS, "SSH")
    ss_load(g, SS, 16, 30, 110)
    unit_off(g, 7, 110)
    tile_soff(g, 36)
    g.ws_srd(16, P_WS, "HC")
    e(f"buffer_load_dwordx4 v[{HCR}:{HCR+3}], v7, s[16:19], s36 offen sc1")
    g.ws_srd(16, P_WS, "MEANH")
    e(f"""v_add_u32 v110, s30, v3
    v_lshlrev_b32 v110, 2, v110
    buffer_load_dword v{MH}, v110, s[16:19], 0 offen sc1""")
    e(f"""s_mov_b32 s31, -1
    s_mov_b32 s32, 1
    s_cmp_eq_u32 s25, 1
    s_cselect_b32 s31, 1, s31
    s_cselect_b32 s32, -2, s32
    s_cmp_eq_u32 s25, 2
    s_cselect_b32 s31, -2, s31
    s_cselect_b32 s32, 2, s32""")
    for (v, sd) in ((111, 31), (112, 32)):
        e(f"""v_add_u32 v113, s30, v3
        v_add_u32 v113, s{sd}, v113
        v_lshrrev_b32 v{v}, 4, v113
        v_mul_u32_u24 v{v}, 18432, v{v}
        v_and_b32 v114, 15, v113
        v_lshl_add_u32 v{v}, v114, 4, v{v}
        v_lshl_add_u32 v{v}, v4, 8, v{v}
        v_cmp_gt_u32 vcc, {S}, v113
        v_mov_b32 v114, 0x7fff0000
        s_nop 0
        v_cndmask_b32 v{v}, v114, v{v}, vcc""")
    e("""v_cmp_gt_u32 vcc, 2, v4
    s_nop 1
    v_cndmask_b32 v113, v112, v111, vcc""")
    e(f"s_add_u32 s33, s20, {CNT_C - 1}")
    e("s_waitcnt vmcnt(0)")
    if check_wp:
        R = MAPR; J = 32 // R; lr = R.bit_length() - 1; lj = J.bit_length() - 1; njg = 8 // J
        e(f"""s_and_b32 s34, s2, {njg-1}
        s_lshl_b32 s34, s34, {lj}
        s_lshr_b32 s35, s2, {3+lr}
        s_add_u32 s34, s34, s35
        s_add_u32 s34, s34, 144""")
        wait_cnt(m, 33, 3, 8, lo=CNT_C, hi=CNT_C + 31, extra=34)
    else:
        wait_cnt(m, 33, 3, 8, lo=CNT_C, hi=CNT_C + 31)
    lanes(g)
    stamp(m, "D:go")
    g.ws_srd(8, P_WS, "HH")
    e("s_mul_i32 s27, s25, 6144\ns_add_u32 s28, s27, 4096")
    def xl(i, v):
        so = "s27" if i < 4 else "s28"
        e(f"buffer_load_dwordx4 v[{XF+4*i}:{XF+4*i+3}], v{v}, s[8:11], {so} offen offset:{(i%4)*1024} sc1")
    e(f"s_cmp_eq_u32 s25, 1\ns_cbranch_scc1 {name}_x1\ns_cmp_eq_u32 s25, 2\ns_cbranch_scc1 {name}_x2")
    for i, v in enumerate((111, 111, 111, 111, 113, 112)): xl(i, v)
    e(f"s_branch {name}_xd")
    g.lab(f"{name}_x1")
    for i, v in enumerate((111, 111, 111, 112, 112, 112)): xl(i, v)
    e(f"s_branch {name}_xd")
    g.lab(f"{name}_x2")
    for i, v in enumerate((111, 113, 112, 112, 112, 112)): xl(i, v)
    g.lab(f"{name}_xd")
    g.ws_srd(44, P_WS, "X1C"); g.ws_srd(48, P_WS, "BASE"); g.ws_srd(52, P_WS, "SS1")
    e("s_mul_i32 s28, s25, 6")
    tr_base(g, 5, 110, 28)
    ss_reduce(g, SS, 110)
    e(f"""v_mov_b32 v{SS+1}, {hx(1e-5)}
    v_fmac_f32 v{SS+1}, {hx(1.0/576)}, v{SS}
    v_rsq_f32 v{SS+2}, v{SS+1}""")
    swap_pair(g, HCR)
    unpack4(g, HCR, 112); unpack4(g, HCR + 2, 116)
    e("s_waitcnt vmcnt(0)")
    stamp(m, "D:loaded")
    gemm_stage(g, XF, AF, ACC, 5)
    if check_wp:
        e("s_mov_b32 s38, s20\ns_mov_b32 s39, s21")
        efmap(g)
        e(f"""s_mul_i32 s31, s21, 12
        s_add_u32 s31, s31, s{S_W}
        s_mul_i32 s31, s31, {WP_WAVE}""")
        g.ws_srd(12, P_WS, "WP")
        for sl in range(RINGK):
            for i in range(3):
                r = 124 + (sl*3+i)*4
                e(f"buffer_load_dwordx4 v[{r}:{r+3}], v2, s[12:15], s31 offen offset:{i*1024}")
            e("s_add_u32 s31, s31, 3072")
        e("s_mov_b32 s20, s38\ns_mov_b32 s21, s39")
    red_write(g, ACC, 5)
    e("s_waitcnt lgkmcnt(0)\ns_barrier")
    stamp(m, "D:red")
    red_addr(g, 5)
    mean_extra_read(g, ACC, 110)
    red_read(g, AF, 5, 0)
    red_read(g, AF + 12, 5, 1024)
    e("s_waitcnt lgkmcnt(6)")
    m1 = ACC
    mean_extra_sum(g, m1)
    e(f"v_mov_b32 v{m1+6}, 0")
    e("s_waitcnt lgkmcnt(0)")
    for (a, h) in ((AF, 112), (AF + 12, 116)):
        sum3(g, a)
        for r in range(4): e(f"v_fmac_f32 v{a+r}, v{h+r}, v{SS+2}")
        for r in range(4): e(f"v_add_f32 v{h+r}, v{h+r}, v{MH}")
        for r in range(4): e(f"v_add_f32 v{h+r}, v{h+r}, v{a+r}")
        for r in range(4): e(f"v_sub_f32 v{a+r}, v{a+r}, v{m1}")
    e(f"s_cmp_eq_u32 s25, 2\ns_cbranch_scc1 {name}_q2")
    for a in (AF, AF + 12):
        for r in range(4): e(f"v_fmac_f32 v{m1+6}, v{a+r}, v{a+r}")
    e(f"s_branch {name}_q3")
    g.lab(f"{name}_q2")
    e("s_mov_b64 exec, 0xffffffff")
    for r in range(4): e(f"v_fmac_f32 v{m1+6}, v{AF+r}, v{AF+r}")
    e("s_mov_b64 exec, -1")
    g.lab(f"{name}_q3")
    e(f"""v_cvt_pk_bf16_f32 v80, v{AF}, v{AF+1}
    v_cvt_pk_bf16_f32 v81, v{AF+2}, v{AF+3}
    v_cvt_pk_bf16_f32 v82, v{AF+12}, v{AF+13}
    v_cvt_pk_bf16_f32 v83, v{AF+14}, v{AF+15}
    v_cvt_pk_bf16_f32 v84, v112, v113
    v_cvt_pk_bf16_f32 v85, v114, v115
    v_cvt_pk_bf16_f32 v86, v116, v117
    v_cvt_pk_bf16_f32 v87, v118, v119""")
    swap_pair(g, 80); swap_pair(g, 84)
    own_mask(g, name)
    e("buffer_store_dwordx4 v[80:83], v7, s[44:47], s36 offen sc1")
    e("buffer_store_dwordx4 v[84:87], v7, s[48:51], s36 offen sc1")
    e("s_mov_b64 exec, -1")
    ss_store(g, m1 + 6, 52, 110)
    finish_signal(m, CNT_D, 2)
    stamp(m, "D:sig")
    rt_all(m, 5)

LDS_X, LDS_H, LDS_FLAG = 0, 73728, 147456
RINGK = 3
def phase_ef(m, ring_pre=False):
    g = m.g; e = g.e; name = m.lab("E")
    NR = RINGK * 3
    ACC, BF, CONST, RING = 36, 20, 8, 124
    lanes(g); efmap(g)
    e(f"""s_mul_i32 s31, s21, 12
    s_add_u32 s31, s31, s{S_W}
    s_mul_i32 s31, s31, {WP_WAVE}""")
    g.ws_srd(12, P_WS, "WP")
    if not ring_pre:
        for sl in range(RINGK):
            for i in range(3):
                r = RING + (sl*3+i)*4
                e(f"buffer_load_dwordx4 v[{r}:{r+3}], v2, s[12:15], s31 offen offset:{i*1024}")
            e("s_add_u32 s31, s31, 3072")
    else:
        e(f"s_add_u32 s31, s31, {RINGK*3072}")
    e(f"s_add_u32 s33, s20, {CNT_D}")
    wait_cnt(m, 33, 1, 8)
    lanes(g)
    stamp(m, "E:go")
    e(f"""s_cmp_lg_u32 s{S_W}, 4
    s_cbranch_scc1 {name}_noz
    v_lshlrev_b32 v5, 2, v1
    v_add_u32 v5, {LDS_FLAG + 1024}, v5
    v_mov_b32 v6, 0
    ds_write_b32 v5, v6""")
    g.lab(f"{name}_noz")

    e(f"""s_mul_i32 s28, s20, 73728
    s_mul_i32 s29, s{S_W}, 6144
    s_add_u32 s28, s28, s29
    s_mov_b32 m0, s29""")
    g.ws_srd(8, P_WS, "X1C")
    for i in range(6):
        if i == 4:
            e("s_add_u32 m0, s29, 4096\ns_add_u32 s28, s28, 4096\ns_nop 0")
        e(f"buffer_load_dwordx4 v2, s[8:11], s28 offen offset:{(i%4)*1024} sc1 lds")
    if WPT2:
        wp_touch(m, 1)
        efmap(g)
    g.ws_srd(16, P_WS, "SS1")
    e(f"""s_cmp_ge_u32 s{S_W}, 4
    s_cbranch_scc1 {name}_noss
    s_lshl_b32 s30, s20, 6
    s_lshl_b32 s33, s{S_W}, 4
    s_add_u32 s30, s30, s33""")
    ss_load(g, ACC, 16, 30, 5)
    e("s_waitcnt vmcnt(0)")
    ss_reduce(g, ACC, ACC + 8)
    a = ACC; c = CONST
    e(f"""v_mov_b32 v{a+1}, {hx(1e-5)}
    v_fmac_f32 v{a+1}, {hx(1.0/576)}, v{a}
    v_rsq_f32 v{a+2}, v{a+1}
    s_nop 0
    v_mul_f32 v{c+2}, v{a+1}, v{a+2}
    v_mul_f32 v{c}, {hx(-C1)}, v{a+2}
    v_mul_f32 v{a+3}, v{a+2}, v{a+2}
    v_mul_f32 v{a+3}, v{a+3}, v{a+2}
    v_mul_f32 v{c+1}, {hx(-C2)}, v{a+3}
    s_lshl_b32 s33, s{S_W}, 8
    v_lshlrev_b32 v5, 4, v3
    v_add_u32 v5, s33, v5
    v_add_u32 v5, {LDS_FLAG}, v5
    ds_write_b96 v5, v[{CONST}:{CONST+2}]""")
    g.lab(f"{name}_noss")
    g.ws_srd(24, P_WS, "PART")
    e(f"""s_mul_i32 s32, s{S_W}, 3
    s_waitcnt vmcnt(0) lgkmcnt(0)
    s_barrier""")
    stamp(m, "E:loaded")
    e(f"v_lshlrev_b32 v5, 4, v3\nv_add_u32 v5, {LDS_FLAG}, v5")
    for st in range(4):
        e(f"ds_read_b96 v[{BF+4*st}:{BF+4*st+2}], v5 offset:{st*256}")
    for i in range(48): e(f"v_mov_b32 v{ACC+i}, 0")
    e("s_waitcnt lgkmcnt(0)")
    for st in range(4):
        for k in range(3): e(f"v_mov_b32 v{(100+4*st if PKG else CONST+3*st)+k}, v{BF+4*st+k}")
    e(f"s_mov_b32 s34, 0\ns_mov_b32 s35, 0\nv_mov_b32 v7, v2\ns_setprio {PRIO[0]}")
    def body(last):
        for st in range(4):
            e(f"ds_read_b128 v[{BF+4*st}:{BF+4*st+3}], v7 offset:{st*18432}")
        for kk in range(6):
            sl = kk % RINGK
            e(f"s_waitcnt vmcnt({NR-3 if not last else min(NR-3, 3*(5-kk))})")
            for st in range(4):
                b = BF + 4*st
                e("s_waitcnt lgkmcnt(3)" if kk < 5 else f"s_waitcnt lgkmcnt({3-st})")
                for i in range(3):
                    a_ = RING + (sl*3+i)*4
                    c_ = ACC + (i*4+st)*4
                    e(f"v_mfma_f32_16x16x32_bf16 v[{c_}:{c_+3}], v[{a_}:{a_+3}], v[{b}:{b+3}], v[{c_}:{c_+3}]")
                if kk < 5:
                    e(f"ds_read_b128 v[{b}:{b+3}], v7 offset:{st*18432 + (kk+1)*1024}")
            if not (last and kk >= 6 - RINGK):
                for i in range(3):
                    r = RING + (sl*3+i)*4
                    e(f"buffer_load_dwordx4 v[{r}:{r+3}], v2, s[12:15], s31 offen offset:{i*1024}")
                e("s_add_u32 s31, s31, 3072")
    g.lab(f"{name}_loop")
    body(False)
    e(f"""v_add_u32 v7, 6144, v7
    s_add_u32 s35, s35, 1
    s_cmp_eq_u32 s34, 0
    s_cbranch_scc0 {name}_p1next
    s_cmp_lt_u32 s35, 3
    s_cbranch_scc1 {name}_loop
    s_setprio {PRIO[1]}
    s_nop 7""")
    stamp(m, "E:g1")
    e(f"""v_lshrrev_b32 v4, 5, v1
    s_mul_i32 s36, s{S_W}, 6
    v_add_u32 v4, s36, v4
    v_lshlrev_b32 v4, 8, v4
    v_lshl_add_u32 v4, v3, 4, v4
    v_bfe_u32 v5, v1, 4, 1
    v_lshl_add_u32 v4, v5, 3, v4
    v_add_u32 v4, {LDS_H}, v4""")
    for i in range(3):
        for st in range(4):
            c_ = ACC + (i*4+st)*4; k = CONST + 3*st
            t = BF + ((i*4+st) % 4) * 4
            if PKG: gelu4p(g, c_, t, 100 + 4*st)
            else: gelu4(g, c_, t, k)
            e(f"ds_write_b64 v4, v[{t}:{t+1}] offset:{st*18432 + i*512}")
    for i in range(48): e(f"v_mov_b32 v{ACC+i}, 0")
    e(f"""s_waitcnt lgkmcnt(0)
    s_lshr_b32 s36, s{S_W}, 2
    s_lshl_b32 s36, s36, 2
    s_add_u32 s36, s36, {LDS_FLAG + 1024}
    v_mov_b32 v4, s36
    v_mov_b32 v5, 1
    s_mov_b64 exec, 1
    ds_add_u32 v4, v5
    s_mov_b64 exec, -1
    s_setprio {PRIO[2]}
    s_mov_b32 s34, 1
    s_mov_b32 s35, 0
    v_add_u32 v7, {LDS_H}, v2""")
    stamp(m, "E:gelu")
    g.lab(f"{name}_p1next")
    L = f"{name}_wf"
    e(f"""s_lshl_b32 s36, s35, 2
    s_add_u32 s36, s36, {LDS_FLAG + 1024}
    v_mov_b32 v4, s36""")
    g.lab(L)
    e(f"""ds_read_b32 v5, v4
    s_waitcnt lgkmcnt(0)
    v_readfirstlane_b32 s36, v5
    s_cmp_ge_u32 s36, 4
    s_cbranch_scc1 {L}_ok
    s_sleep 1
    s_branch {L}""")
    g.lab(L + "_ok")
    e(f"s_cmp_lt_u32 s35, 2\ns_cbranch_scc1 {name}_loop")
    body(True)
    e("s_nop 7")
    stamp(m, "E:g2")
    e(f"""s_lshl_b32 s36, s21, 5
    s_add_u32 s36, s36, s20
    s_mul_i32 s36, s36, 72
    s_mul_i32 s33, s{S_W}, 6
    s_add_u32 s36, s36, s33
    s_lshl_b32 s36, s36, 10""")
    for i in range(3):
        for stp in range(2):
            c0 = ACC + (i*4+2*stp)*4; c1 = c0 + 4
            e(f"v_cvt_pk_bf16_f32 v{c0}, v{c0}, v{c0+1}")
            e(f"v_cvt_pk_bf16_f32 v{c0+1}, v{c0+2}, v{c0+3}")
            e(f"v_cvt_pk_bf16_f32 v{c0+2}, v{c1}, v{c1+1}")
            e(f"v_cvt_pk_bf16_f32 v{c0+3}, v{c1+2}, v{c1+3}")
            k = i*2 + stp
            if k == 4: e("s_add_u32 s36, s36, 4096")
            e(f"buffer_store_dwordx4 v[{c0}:{c0+3}], v2, s[24:27], s36 offen offset:{(k%4)*1024} sc1")
    finish_signal(m, CNT_E, 3)
    stamp(m, "E:sig")
    rt_all(m, 6)

def phase_g(m):
    g = m.g; e = g.e; name = m.lab("G")
    lanes(g); efmap(g)
    e(f"""s_mul_i32 s24, s21, 9
    s_add_u32 s24, s24, s{S_W}
    s_lshr_b32 s25, s24, 1               ; t
    s_and_b32 s26, s24, 1                ; stp
    s_lshl_b32 s27, s20, 2
    s_lshl_b32 s28, s26, 1
    s_add_u32 s27, s27, s28
    s_mul_i32 s28, s27, 72
    s_lshl_b32 s29, s25, 1
    s_add_u32 s28, s28, s29
    s_lshl_b32 s28, s28, 8
    v_lshrrev_b32 v5, 5, v1
    v_lshlrev_b32 v5, 8, v5
    v_lshl_add_u32 v5, v3, 4, v5
    v_bfe_u32 v6, v1, 4, 1
    v_lshl_add_u32 v5, v6, 3, v5""")
    g.ws_srd(12, P_WS, "BASE")
    e(f"""s_cmp_ge_u32 s{S_W}, 9
    s_cbranch_scc1 {name}_w
    buffer_load_dwordx2 v[8:9], v5, s[12:15], s28 offen sc1
    s_add_u32 s28, s28, 18432
    buffer_load_dwordx2 v[10:11], v5, s[12:15], s28 offen sc1""")
    g.lab(f"{name}_w")
    e(f"s_add_u32 s33, s20, {CNT_E}")
    e("s_waitcnt vmcnt(0)")
    wait_cnt(m, 33, 1, 8)
    lanes(g)
    stamp(m, "G:go")
    e(f"s_cmp_ge_u32 s{S_W}, 9\ns_cbranch_scc1 {name}_end")
    g.ws_srd(8, P_WS, "PART"); g.srd_from(16, PTR["out"], 0, FMSZ)
    e(f"""s_mul_i32 s30, s20, 72
    s_add_u32 s30, s30, s24
    s_lshl_b32 s30, s30, 10""")
    for j in range(8):
        e(f"buffer_load_dwordx4 v[{12+4*j}:{15+4*j}], v2, s[8:11], s30 offen sc1")
        if j < 7: e(f"s_add_u32 s30, s30, {32*72*1024}")
    e("""s_lshl_b32 s27, s27, 4
    v_add_u32 v6, s27, v3
    v_mul_u32_u24 v6, 1152, v6
    s_lshl_b32 s25, s25, 5
    v_lshl_add_u32 v6, v4, 3, v6
    v_add_u32 v6, s25, v6
    v_add_u32 v7, 18432, v6""")
    for d in range(4):
        e(f"v_lshlrev_b32 v{48+2*d}, 16, v{8+d}")
        e(f"v_and_b32 v{49+2*d}, 0xffff0000, v{8+d}")
    for j in range(8):
        e(f"s_waitcnt vmcnt({7-j})")
        for d in range(4):
            r = 12 + 4*j + d
            e(f"v_lshlrev_b32 v56, 16, v{r}")
            e(f"v_and_b32 v57, 0xffff0000, v{r}")
            e(f"v_add_f32 v{48+2*d}, v{48+2*d}, v56")
            e(f"v_add_f32 v{49+2*d}, v{49+2*d}, v57")
    for d in range(4): e(f"v_cvt_pk_bf16_f32 v{8+d}, v{48+2*d}, v{49+2*d}")
    e("buffer_store_dwordx2 v[8:9], v6, s[16:19], 0 offen")
    e("buffer_store_dwordx2 v[10:11], v7, s[16:19], 0 offen")
    g.lab(f"{name}_end")
    stamp(m, "G:end")
    rt_all(m, 7)
```
